```python
import torch

def _softmax(x, axis=-1):
    return torch.softmax(x, dim=axis)
def _gelu(x):
    return torch.nn.functional.gelu(x, approximate="tanh")
def _silu(x):
    return torch.nn.functional.silu(x)
def _sigmoid(x):
    return torch.sigmoid(x)
def _layernorm(x, axis=-1, eps=1e-5):
    m = x.mean(dim=axis, keepdim=True)
    v = x.var(dim=axis, keepdim=True, unbiased=False)
    return (x - m) / torch.sqrt(v + eps)
def _scatter_add(tgt, idx, src, axis=0):
    return tgt.clone().index_add_(axis, idx, src)
def _segment_sum(src, seg, n):
    out = torch.zeros((n,) + src.shape[1:], dtype=src.dtype)
    return out.index_add_(0, seg, src)
def _pad(x, pw):
    flat = tuple(v for pair in reversed(pw) for v in pair)
    return torch.nn.functional.pad(x, flat)

kernel_name = 'interleave_layers__spectral_gfnet__dense_activation_gelu__prompt'

def setup_inputs():

    _w = (lambda a: (lambda t: t.to(torch.bfloat16) if t.is_floating_point() else t)(torch.as_tensor(a)))
    def _A_setup():
        B, S, D = 1, 2048, 512
        Df = D // 2 + 1
        return {
            "x": _w((lambda *s: torch.randn(*s, dtype=torch.bfloat16) * 0.05)(B, S, D)),
            "w_r": _w((lambda *s: torch.randn(*s, dtype=torch.bfloat16) * 0.4)(S, Df) * 0.02),
            "w_i": _w((lambda *s: torch.randn(*s, dtype=torch.bfloat16) * 0.4)(S, Df) * 0.02),
        }
    _A_in = _A_setup()

    def _B_setup():
        B, S, D, F = 1, 2048, 512, 1792
        return {
            "x": _w((lambda *s: torch.randn(*s, dtype=torch.bfloat16) * 0.05)(B, S, D)),
            "w1": _w((lambda *s: torch.randn(*s, dtype=torch.bfloat16) * 0.4)(D, F) * (D ** -0.5)),
            "b1": _w((lambda *s: torch.randn(*s, dtype=torch.bfloat16) * 12.8)(F) * 0.01),
            "w2": _w((lambda *s: torch.randn(*s, dtype=torch.bfloat16) * 0.1)(F, D) * (F ** -0.5)),
            "b2": _w((lambda *s: torch.randn(*s, dtype=torch.bfloat16) * 0.8)(D) * 0.01),
        }
    _B_in = _B_setup()

    return {
        "A_x": _A_in["x"],
        "A_w_r": _A_in["w_r"],
        "A_w_i": _A_in["w_i"],
        "B_x": _B_in["x"],
        "B_w1": _B_in["w1"],
        "B_b1": _B_in["b1"],
        "B_w2": _B_in["w2"],
        "B_b2": _B_in["b2"],
    }

def reference(A_x, A_w_r, A_w_i, B_x, B_w1, B_b1, B_w2, B_b2):
    def _A_ref(x, w_r, w_i):
        B, S, D = x.shape
        X = (lambda x, axes=(-2,-1): torch.fft.rfft2(x.float(), dim=axes))(x, axes=(-2, -1))
        W = w_r + 1j * w_i
        X = X * W
        y = (lambda x, s, axes=(-2,-1): torch.fft.irfft2(x, s=s, dim=axes).to(torch.bfloat16))(X, (S, D), axes=(-2, -1))
        return y

    def _B_ref(x, w1, b1, w2, b2):
        h = torch.einsum("bsd,df->bsf", x, w1) + b1
        h = _gelu(h)
        return torch.einsum("bsf,fd->bsd", h, w2) + b2

    x = A_x
    x = x + _A_ref(_layernorm(x, axis=-1), A_w_r, A_w_i)
    x = x + _B_ref(_layernorm(x, axis=-1), B_w1, B_b1, B_w2, B_b2)
    x = x + _A_ref(_layernorm(x, axis=-1), A_w_r, A_w_i)
    x = x + _B_ref(_layernorm(x, axis=-1), B_w1, B_b1, B_w2, B_b2)
    return x
```

```python
import math
from gen import *

C1 = -2.0 * math.sqrt(2.0 / math.pi) * math.log2(math.e)
C2 = C1 * 0.044715


def gen_g1(name):
    k = K(name)
    end = k.label("end")
    k("s_cmp_ge_u32 s2, 224")
    k(f"s_cbranch_scc1 {end}")
    k(f"s_load_dwordx2 s[6:7], s[0:1], {KA_WS}")
    k(f"s_load_dwordx2 s[4:5], s[0:1], {KA_B1}")
    k("v_lshrrev_b32 v2, 6, v0")
    k("v_and_b32 v1, 63, v0")
    k("v_readfirstlane_b32 s3, v2")
    k(f"s_mul_hi_u32 s16, s2, {(1 << 32) // 14 + 1}")
    k("s_mul_i32 s17, s16, 14")
    k("s_sub_u32 s17, s2, s17")
    k("v_lshlrev_b32 v3, 4, v1")
    k("v_lshrrev_b32 v4, 3, v1")
    k("v_lshrrev_b32 v5, 4, v1")
    k("v_and_b32 v6, 7, v1")
    k("v_xor_b32 v7, v6, v5")
    k("v_lshlrev_b32 v7, 4, v7")
    k("v_lshl_add_u32 v7, v4, 10, v7")
    k("v_xor_b32 v8, 64, v7")
    k("s_waitcnt lgkmcnt(0)")
    k.srd(8, 6, WS_W1F, 1792 * 1024)
    k.srd(12, 6, WS_AP, 2 * MB)
    k.srd(24, 4, 0, 3584)
    k.srd(28, 6, WS_HF, 2048 * 3584)
    k("s_and_b32 s18, s3, 1")
    k("s_lshr_b32 s19, s3, 1")
    k("v_lshrrev_b32 v9, 5, v1")
    k("v_lshlrev_b32 v10, 3, v9")
    k("s_lshl_b32 s32, s17, 8")
    k("s_lshl_b32 s33, s18, 7")
    k("s_add_u32 s32, s32, s33")
    BI = 200
    for a in range(2):
        for g in range(4):
            k(f"buffer_load_dwordx2 v[{BI + 8*a + 2*g}:{BI + 8*a + 2*g + 1}], v10, s[24:27], s32 offen offset:{64*a + 16*g}")
    k("s_lshl_b32 s34, s17, 2")
    k("s_add_u32 s34, s34, s3")
    k("s_lshl_b32 s34, s34, 15")
    k("s_lshl_b32 s35, s16, 2")
    k("s_add_u32 s35, s35, s3")
    k("s_lshl_b32 s35, s35, 15")
    k("s_lshl_b32 s36, s3, 12")

    def dma(stage):
        slot = (stage & 3) * 32768
        k(f"s_add_u32 m0, s36, {slot}")
        k(f"s_add_u32 s37, s34, {stage * 4096}")
        for kb in range(4):
            k(f"buffer_load_dwordx4 v3, s[8:11], s37 offen offset:{1024*kb} lds")
        k(f"s_add_u32 m0, s36, {slot + 16384}")
        for i in range(4):
            k(f"s_add_u32 s37, s35, {stage * 128 + 7168 * i}")
            k(f"buffer_load_dwordx4 v{7 + (i & 1)}, s[12:15], s37 offen offset:{1024*i} lds")

    for st in range(3):
        dma(st)
    k("s_lshl_b32 s38, s18, 13")
    k("v_add_u32 v11, s38, v3")
    k("v_add_u32 v12, 0x10000, v11")
    k("v_and_b32 v13, 31, v1")
    k("v_bfe_u32 v14, v1, 1, 3")
    k("v_xor_b32 v14, v14, v9")
    k("v_lshlrev_b32 v14, 4, v14")
    k("v_lshl_add_u32 v13, v13, 7, v14")
    k("s_lshl_b32 s38, s19, 13")
    k("s_add_u32 s38, s38, 16384")
    k("v_add_u32 v13, s38, v13")
    for kb in range(4):
        k(f"v_xor_b32 v{16+kb}, {32*kb}, v13")
        k(f"v_add_u32 v{20+kb}, 0x10000, v{16+kb}")
    ACC = 64
    for r in range(64):
        k(f"v_mov_b32 v{ACC + r}, 0")
    FR = [128, 144]

    def reads(n):
        st, kb = n >> 2, n & 3
        sl = st & 3
        o = (sl & 1) * 32768
        va = 11 if sl < 2 else 12
        vb = (16 if sl < 2 else 20) + kb
        f = FR[n & 1]
        for a in range(2):
            k(f"ds_read_b128 v[{f + 4*a}:{f + 4*a + 3}], v{va} offset:{o + a*4096 + kb*1024}")
        for b in range(2):
            k(f"ds_read_b128 v[{f + 8 + 4*b}:{f + 8 + 4*b + 3}], v{vb} offset:{o + b*4096}")

    def mfmas(n):
        f = FR[n & 1]
        for a in range(2):
            for b in range(2):
                c = ACC + 16 * (2 * a + b)
                k(f"v_mfma_f32_32x32x16_bf16 v[{c}:{c+15}], v[{f+4*a}:{f+4*a+3}], v[{f+8+4*b}:{f+8+4*b+3}], v[{c}:{c+15}]")

    def sync(st):
        outst = min(2, 7 - st) * 8
        k(f"s_waitcnt vmcnt({outst})")
        k("s_barrier")
        if st + 3 <= 7:
            dma(st + 3)

    sync(0)
    reads(0)
    for n in range(32):
        k("s_waitcnt lgkmcnt(0)")
        if n + 1 < 32:
            if (n + 1) & 3 == 0:
                sync((n + 1) >> 2)
            reads(n + 1)
        mfmas(n)
    k(f"s_mov_b32 s40, {f32(C1)}"); k(f"s_mov_b32 s41, {f32(C1)}")
    k(f"s_mov_b32 s42, {f32(C2)}"); k(f"s_mov_b32 s43, {f32(C2)}")
    k(f"s_mov_b32 s44, 1.0"); k(f"s_mov_b32 s45, 1.0")
    BF = 216
    for i in range(16):
        k(f"v_lshlrev_b32 v{BF + 2*i}, 16, v{BI + i}")
        k(f"v_and_b32 v{BF + 2*i + 1}, 0xffff0000, v{BI + i}")
    k("s_lshl_b32 s46, s16, 2")
    k("s_lshl_b32 s47, s19, 1")
    k("s_add_u32 s46, s46, s47")
    k("s_mul_i32 s46, s46, 112")
    k("s_lshl_b32 s47, s17, 3")
    k("s_add_u32 s46, s46, s47")
    k("s_lshl_b32 s47, s18, 2")
    k("s_add_u32 s46, s46, s47")
    k("s_lshl_b32 s46, s46, 10")
    k("s_nop 7")
    T = 128
    for a in range(2):
        for b in range(2):
            c = ACC + 16 * (2 * a + b)
            ob = 160 + 8 * ((2 * a + b) & 1)
            for p in range(8):
                x = c + 2 * p
                t0 = T + 4 * (p & 3)
                k.round_pair(x, t0)
                k(f"v_pk_add_f32 {k.P(x)}, {k.P(x)}, {k.P(BF + 16*a + 2*p)}")
                k.round_pair(x, t0)
                k(f"v_pk_mul_f32 {k.P(t0)}, {k.P(x)}, {k.P(x)}")
                k(f"v_pk_fma_f32 {k.P(t0)}, {k.P(t0)}, s[42:43], s[40:41]") if False else None
                k(f"v_pk_mul_f32 {k.P(t0)}, {k.P(t0)}, s[42:43]")
                k(f"v_pk_add_f32 {k.P(t0)}, {k.P(t0)}, s[40:41]")
                k(f"v_pk_mul_f32 {k.P(t0)}, {k.P(t0)}, {k.P(x)}")
                k(f"v_exp_f32 v{t0}, v{t0}")
                k(f"v_exp_f32 v{t0+1}, v{t0+1}")
                k("s_nop 0")
                k(f"v_pk_add_f32 {k.P(t0)}, {k.P(t0)}, s[44:45]")
                k(f"v_rcp_f32 v{t0}, v{t0}")
                k(f"v_rcp_f32 v{t0+1}, v{t0+1}")
                k("s_nop 0")
                k(f"v_pk_mul_f32 {k.P(x)}, {k.P(x)}, {k.P(t0)}")
                k(f"v_cvt_pk_bf16_f32 v{ob + p}, v{x}, v{x+1}")
            k(f"s_add_u32 s47, s46, {b * 112 * 1024 + a * 2048}")
            k(f"buffer_store_dwordx4 v[{ob}:{ob+3}], v3, s[28:31], s47 offen")
            k(f"buffer_store_dwordx4 v[{ob+4}:{ob+7}], v3, s[28:31], s47 offen offset:1024")
    k.put(end)
    k("s_endpgm")
    return k


def gen_g2(name, first):
    k = K(name)
    end = k.label("end")
    k("s_cmp_ge_u32 s2, 256")
    k(f"s_cbranch_scc1 {end}")
    k(f"s_load_dwordx2 s[6:7], s[0:1], {KA_WS}")
    k(f"s_load_dwordx2 s[4:5], s[0:1], {KA_B2}")
    if not first:
        k(f"s_load_dwordx2 s[48:49], s[0:1], {KA_OUT}")
    k("v_lshrrev_b32 v2, 6, v0")
    k("v_and_b32 v1, 63, v0")
    k("v_readfirstlane_b32 s3, v2")
    k("s_and_b32 s17, s2, 7")
    k("s_lshr_b32 s16, s2, 3")
    k("v_lshlrev_b32 v3, 4, v1")
    k("s_waitcnt lgkmcnt(0)")
    k.srd(8, 6, WS_W2F, 1792 * 1024)
    k.srd(12, 6, WS_HF, 2048 * 3584)
    k.srd(24, 4, 0, 1024)
    k.srd(28, 6, WS_X1 if first else WS_X3, 2 * MB)
    if first:
        k.srd(32, 6, WS_X2, 2 * MB)
    else:
        k.srd(32, 48, 0, 2 * MB)
    k("s_mul_i32 s36, s3, 28672")
    k("s_mul_i32 s37, s17, 229376")
    k("s_add_u32 s37, s37, s36")
    k(f"s_add_u32 s38, s37, {112*1024}")
    k("s_mul_i32 s39, s16, 229376")
    k("s_add_u32 s39, s39, s36")
    k(f"s_add_u32 s40, s39, {112*1024}")
    PD = 8
    NS = 28
    ACC = 16
    FB = 80

    def loads(i):
        f = FB + 16 * (i % PD)
        off = 1024 * (i & 3)
        for j, (srd, sb) in enumerate([(8, 37), (8, 38), (12, 39), (12, 40)]):
            k(f"buffer_load_dwordx4 v[{f+4*j}:{f+4*j+3}], v3, s[{srd}:{srd+3}], s{sb} offen offset:{off}")
        if i & 3 == 3:
            for sb in (37, 38, 39, 40):
                k(f"s_add_u32 s{sb}, s{sb}, 4096")

    for i in range(PD):
        loads(i)
    k("s_lshr_b32 s41, s3, 1")
    k("s_and_b32 s42, s3, 1")
    k("v_and_b32 v4, 31, v1")
    k("v_lshrrev_b32 v5, 5, v1")
    k("v_lshlrev_b32 v6, 4, v5")
    k("v_lshl_add_u32 v7, v4, 10, v6")
    k("s_lshl_b32 s43, s17, 1")
    k("s_add_u32 s43, s43, s41")
    k("s_lshl_b32 s43, s43, 6")
    k("s_lshl_b32 s44, s16, 1")
    k("s_add_u32 s44, s44, s42")
    k("s_lshl_b32 s44, s44, 15")
    k("s_add_u32 s44, s44, s43")
    EX = 208
    for r in range(64):
        k(f"v_mov_b32 v{ACC + r}, 0")
    for i in range(NS):
        rem = min(PD, NS - i) - 1
        k(f"s_waitcnt vmcnt({4*rem + (4 if i >= NS - PD + 1 else 0)})") if False else None
        extra = 4 if i > NS - PD else 0
        k(f"s_waitcnt vmcnt({4*rem + extra})")
        f = FB + 16 * (i % PD)
        for a in range(2):
            for b in range(2):
                c = ACC + 16 * (2 * a + b)
                k(f"v_mfma_f32_32x32x16_bf16 v[{c}:{c+15}], v[{f+4*a}:{f+4*a+3}], v[{f+8+4*b}:{f+8+4*b+3}], v[{c}:{c+15}]")
        if i + PD < NS:
            loads(i + PD)
        elif i + PD == NS:
            k(f"buffer_load_dwordx4 v[{EX}:{EX+3}], v7, s[28:31], s44 offen")
            k(f"buffer_load_dwordx4 v[{EX+4}:{EX+7}], v7, s[28:31], s44 offen offset:32")
            k(f"buffer_load_dwordx4 v[{EX+8}:{EX+11}], v6, s[24:27], s43 offen")
            k(f"buffer_load_dwordx4 v[{EX+12}:{EX+15}], v6, s[24:27], s43 offen offset:32")
    k("s_lshl_b32 s45, s3, 14")
    k("v_add_u32 v8, s45, v3")
    k("s_lshl_b32 s45, s3, 12")
    k("v_add_u32 v9, s45, v3")
    k("s_nop 7")
    k("s_nop 3")
    for q in range(4):
        for j in range(4):
            c = ACC + 16 * q + 4 * j
            k(f"ds_write_b128 v8, v[{c}:{c+3}] offset:{4096*q + 1024*j}")
    k("s_waitcnt lgkmcnt(0)")
    k("s_barrier")
    R = 80
    for w in range(4):
        for j in range(4):
            k(f"ds_read_b128 v[{R + 16*w + 4*j}:{R + 16*w + 4*j + 3}], v9 offset:{16384*w + 1024*j}")
    k("s_waitcnt lgkmcnt(0)")
    for p in range(8):
        k(f"v_pk_add_f32 {k.P(R + 2*p)}, {k.P(R + 2*p)}, {k.P(R + 16 + 2*p)}")
        k(f"v_pk_add_f32 {k.P(R + 32 + 2*p)}, {k.P(R + 32 + 2*p)}, {k.P(R + 48 + 2*p)}")
    for p in range(8):
        k(f"v_pk_add_f32 {k.P(R + 2*p)}, {k.P(R + 2*p)}, {k.P(R + 32 + 2*p)}")
    k("s_waitcnt vmcnt(0)")
    U = 16
    for p in range(8):
        x = R + 2 * p
        k.round_pair(x, U)
        k(f"v_lshlrev_b32 v{U+2}, 16, v{EX + 8 + p}")
        k(f"v_and_b32 v{U+3}, 0xffff0000, v{EX + 8 + p}")
        k(f"v_pk_add_f32 {k.P(x)}, {k.P(x)}, {k.P(U+2)}")
        k.round_pair(x, U)
        k(f"v_lshlrev_b32 v{U+2}, 16, v{EX + p}")
        k(f"v_and_b32 v{U+3}, 0xffff0000, v{EX + p}")
        k(f"v_pk_add_f32 {k.P(x)}, {k.P(x)}, {k.P(U+2)}")
        k(f"v_cvt_pk_bf16_f32 v{24 + p}, v{x}, v{x+1}")
    k("buffer_store_dwordx4 v[24:27], v7, s[32:35], s44 offen")
    k("buffer_store_dwordx4 v[28:31], v7, s[32:35], s44 offen offset:32")
    k.put(end)
    k("s_endpgm")
    return k


def add_stage(st, add):
    if st == "g1":
        add(gen_g1("g1_kernel"), 224, 256, 131072, 248)
    elif st == "g2a":
        add(gen_g2("g2a_kernel", True), 256, 256, 65536, 224)
    elif st == "g2b":
        add(gen_g2("g2b_kernel", False), 256, 256, 65536, 224)
    else:
        raise SystemExit("unknown stage " + st)
```

```python
import sys, struct, math

MB = 1 << 20
WS_CT = 0
WS_DT = 4 * MB
WS_AP = 8 * MB
WS_X1 = 10 * MB
WS_X2 = 12 * MB
WS_X3 = 14 * MB
WS_HF = 16 * MB
WS_W1F = 24 * MB
WS_W2F = 26 * MB
WS_WT = 28 * MB

KA_AX, KA_WR, KA_WI, KA_BX, KA_W1, KA_B1, KA_W2, KA_B2, KA_OUT, KA_DBG, KA_WS = [8 * i for i in range(11)]


def f32(x):
    return "0x%08x" % struct.unpack("<I", struct.pack("<f", x))[0]


class K:
    def __init__(self, name):
        self.name = name
        self.L = []
        self.nlab = 0

    def __call__(self, s):
        self.L.append("  " + s)

    def label(self, base):
        self.nlab += 1
        return f"L_{self.name}_{base}_{self.nlab}"

    def put(self, lab):
        self.L.append(lab + ":")

    @staticmethod
    def P(r):
        return f"v[{r}:{r+1}]"

    def cadd(self, d, a, b):
        self(f"v_pk_add_f32 {self.P(d)}, {self.P(a)}, {self.P(b)}")

    def csub(self, d, a, b):
        self(f"v_pk_add_f32 {self.P(d)}, {self.P(a)}, {self.P(b)} neg_lo:[0,1] neg_hi:[0,1]")

    def caddi(self, d, a, b):
        self(f"v_pk_add_f32 {self.P(d)}, {self.P(a)}, {self.P(b)} op_sel:[0,1] op_sel_hi:[1,0] neg_lo:[0,1]")

    def csubi(self, d, a, b):
        self(f"v_pk_add_f32 {self.P(d)}, {self.P(a)}, {self.P(b)} op_sel:[0,1] op_sel_hi:[1,0] neg_hi:[0,1]")

    def cmul(self, d, a, w, t):
        self(f"v_pk_mul_f32 {self.P(t)}, {self.P(a)}, {self.P(w)} op_sel:[0,0] op_sel_hi:[0,1]")
        self(f"v_pk_fma_f32 {self.P(d)}, {self.P(a)}, {self.P(w)}, {self.P(t)} op_sel:[1,1,0] op_sel_hi:[1,0,1] neg_lo:[1,0,0]")

    def cmulc(self, d, a, w, t):
        self(f"v_pk_mul_f32 {self.P(t)}, {self.P(a)}, {self.P(w)} op_sel:[0,0] op_sel_hi:[1,0]")
        self(f"v_pk_fma_f32 {self.P(d)}, {self.P(a)}, {self.P(w)}, {self.P(t)} op_sel:[1,1,0] op_sel_hi:[0,1,1] neg_hi:[1,0,0]")

    def cscale(self, d, a, sp):
        self(f"v_pk_mul_f32 {self.P(d)}, {self.P(a)}, s[{sp}:{sp+1}]")

    def fft8(self, x, t, inv, SH):
        mi = self.caddi if inv else self.csubi
        pi = self.csubi if inv else self.caddi
        for i in range(4):
            self.cadd(t[i], x[i], x[i + 4])
            self.csub(t[i + 4], x[i], x[i + 4])
        mi(x[5], t[5], t[5])
        pi(x[7], t[7], t[7])
        self.cadd(x[0], t[0], t[2])
        self.csub(x[1], t[0], t[2])
        self.cscale(x[5], x[5], SH)
        self.cscale(x[7], x[7], SH + 2)
        self.cadd(x[2], t[1], t[3])
        self.csub(x[3], t[1], t[3])
        mi(x[4], t[4], t[6])
        pi(x[6], t[4], t[6])
        self.cadd(t[5], x[5], x[7])
        self.csub(t[7], x[5], x[7])
        self.cadd(t[0], x[0], x[2])
        self.csub(t[2], x[0], x[2])
        mi(t[1], x[1], x[3])
        pi(t[3], x[1], x[3])
        self.cadd(t[4], x[4], t[5])
        self.csub(t[6], x[4], t[5])
        mi(x[5], x[6], t[7])
        pi(x[7], x[6], t[7])
        out = [t[0], t[4], t[1], x[5], t[2], t[6], t[3], x[7]]
        free = [x[0], x[1], x[2], x[3], x[4], x[6], t[5], t[7]]
        return out, free

    def fft4(self, x, t, inv):
        mi = self.caddi if inv else self.csubi
        pi = self.csubi if inv else self.caddi
        self.cadd(t[0], x[0], x[2])
        self.csub(t[1], x[0], x[2])
        self.cadd(t[2], x[1], x[3])
        self.csub(t[3], x[1], x[3])
        self.cadd(x[0], t[0], t[2])
        self.csub(x[2], t[0], t[2])
        mi(x[1], t[1], t[3])
        pi(x[3], t[1], t[3])
        return x, t

    def sincos(self, dst, vsrc_f, scale, tmp):
        self(f"v_mul_f32 v{tmp}, {f32(scale)}, v{vsrc_f}")
        self(f"v_cos_f32 v{dst}, v{tmp}")
        self(f"v_sin_f32 v{dst+1}, v{tmp}")

    def wave_reduce2(self, a):
        self("s_nop 1")
        for m in ["row_shr:1 row_mask:0xf bank_mask:0xf bound_ctrl:0", "row_shr:2 row_mask:0xf bank_mask:0xf bound_ctrl:0",
                  "row_shr:4 row_mask:0xf bank_mask:0xf bound_ctrl:0", "row_shr:8 row_mask:0xf bank_mask:0xf bound_ctrl:0",
                  "row_bcast:15 row_mask:0xa bank_mask:0xf", "row_bcast:31 row_mask:0xc bank_mask:0xf"]:
            self(f"v_add_f32_dpp v{a}, v{a}, v{a} {m}")
            self(f"v_add_f32_dpp v{a+1}, v{a+1}, v{a+1} {m}")
            self("s_nop 0")

    def round_pair(self, p, tmp):
        self(f"v_cvt_pk_bf16_f32 v{tmp}, v{p}, v{p+1}")
        self(f"v_lshlrev_b32 v{p}, 16, v{tmp}")
        self(f"v_and_b32 v{p+1}, 0xffff0000, v{tmp}")

    def layernorm(self, z, t, SM):
        self.cadd(t[0], z[0], z[1]); self.cadd(t[1], z[2], z[3]); self.cadd(t[2], z[4], z[5]); self.cadd(t[3], z[6], z[7])
        self.cadd(t[0], t[0], t[1]); self.cadd(t[2], t[2], t[3]); self.cadd(t[0], t[0], t[2])
        a = t[0]
        self.wave_reduce2(a)
        self(f"v_mul_f32 v{a}, {f32(1/512)}, v{a}")
        self(f"v_mul_f32 v{a+1}, {f32(1/512)}, v{a+1}")
        b = t[1]
        self(f"v_cvt_pk_bf16_f32 v{b}, v{a}, v{a+1}")
        self(f"v_and_b32 v{b+1}, 0xffff0000, v{b}")
        self(f"v_lshlrev_b32 v{b}, 16, v{b}")
        self(f"v_readlane_b32 s{SM}, v{a}, 63")
        self(f"v_readlane_b32 s{SM+1}, v{a+1}, 63")
        self(f"v_readlane_b32 s{SM+2}, v{b}, 63")
        self(f"v_readlane_b32 s{SM+3}, v{b+1}, 63")
        self("s_nop 1")
        for m in range(8):
            self(f"v_pk_add_f32 {self.P(t[m])}, {self.P(z[m])}, s[{SM}:{SM+1}] neg_lo:[0,1] neg_hi:[0,1]")
        self(f"v_pk_mul_f32 {self.P(t[0])}, {self.P(t[0])}, {self.P(t[0])}")
        self(f"v_pk_mul_f32 {self.P(t[1])}, {self.P(t[1])}, {self.P(t[1])}")
        for m in range(2, 8):
            acc = t[m & 1]
            self(f"v_pk_fma_f32 {self.P(acc)}, {self.P(t[m])}, {self.P(t[m])}, {self.P(acc)}")
        self.cadd(t[0], t[0], t[1])
        a = t[0]
        self.wave_reduce2(a)
        self(f"v_mul_f32 v{a}, {f32(1/512)}, v{a}")
        self(f"v_mul_f32 v{a+1}, {f32(1/512)}, v{a+1}")
        b = t[1]
        self.round_pair(a, b)
        self(f"v_add_f32 v{a}, {f32(1e-5)}, v{a}")
        self(f"v_add_f32 v{a+1}, {f32(1e-5)}, v{a+1}")
        self.round_pair(a, b)
        self(f"v_sqrt_f32 v{a}, v{a}")
        self(f"v_sqrt_f32 v{a+1}, v{a+1}")
        self("s_nop 0")
        self.round_pair(a, b)
        self(f"v_rcp_f32 v{a}, v{a}")
        self(f"v_rcp_f32 v{a+1}, v{a+1}")
        self("s_nop 1")
        self(f"v_readlane_b32 s{SM+4}, v{a}, 63")
        self(f"v_readlane_b32 s{SM+5}, v{a+1}, 63")
        for m in range(8):
            self(f"v_pk_add_f32 {self.P(z[m])}, {self.P(z[m])}, s[{SM+2}:{SM+3}] neg_lo:[0,1] neg_hi:[0,1]")
            self.round_pair(z[m], t[2 + (m & 1)])
        for m in range(8):
            self.cscale(z[m], z[m], SM + 4)

    def srd(self, s, base_pair, off, size):
        if off:
            self(f"s_add_u32 s{s}, s{base_pair}, {off}")
            self(f"s_addc_u32 s{s+1}, s{base_pair+1}, 0")
        else:
            self(f"s_mov_b32 s{s}, s{base_pair}")
            self(f"s_mov_b32 s{s+1}, s{base_pair+1}")
        self(f"s_mov_b32 s{s+2}, {size}")
        self(f"s_mov_b32 s{s+3}, 0x00020000")

    def text(self):
        return "\n".join([f".globl {self.name}", ".p2align 8", f".type {self.name},@function", f"{self.name}:"] + self.L) + "\n"

    def desc(self, vgpr, sgpr=96, accum=None):
        if accum is None:
            accum = (vgpr + 3) // 4 * 4
        return "\n".join([".p2align 6", f".amdhsa_kernel {self.name}", f"  .amdhsa_next_free_vgpr {vgpr}",
                          f"  .amdhsa_next_free_sgpr {sgpr}", f"  .amdhsa_accum_offset {accum}",
                          "  .amdhsa_group_segment_fixed_size 0", "  .amdhsa_kernarg_size 88",
                          "  .amdhsa_user_sgpr_count 2", "  .amdhsa_user_sgpr_kernarg_segment_ptr 1",
                          "  .amdhsa_system_sgpr_workgroup_id_x 1", ".end_amdhsa_kernel"]) + "\n"


SH = 20


def consts(k):
    k(f"s_mov_b32 s{SH}, {f32(math.sqrt(0.5))}")
    k(f"s_mov_b32 s{SH+1}, {f32(math.sqrt(0.5))}")
    k(f"s_mov_b32 s{SH+2}, {f32(-math.sqrt(0.5))}")
    k(f"s_mov_b32 s{SH+3}, {f32(-math.sqrt(0.5))}")


N_PRE = 384


def gen_p1(name, first):
    k = K(name)
    end = k.label("end")
    total = 128 + (N_PRE if first else 0)
    k(f"s_cmp_ge_u32 s2, {total}")
    k(f"s_cbranch_scc1 {end}")
    k(f"s_load_dwordx2 s[6:7], s[0:1], {KA_WS}")
    if first:
        k(f"s_load_dwordx2 s[4:5], s[0:1], {KA_AX}")
    k("v_lshrrev_b32 v2, 6, v0")
    k("v_and_b32 v1, 63, v0")
    z = [16 + 2 * i for i in range(8)]
    t = [32 + 2 * i for i in range(8)]
    tw1 = [None] + [48 + 2 * i for i in range(7)]
    tw2 = [None] + [62 + 2 * i for i in range(7)]
    k("v_readfirstlane_b32 s3, v2")
    if first:
        pre = k.label("pre")
        k("s_cmp_ge_u32 s2, 128")
        k(f"s_cbranch_scc1 {pre}")
    for r in range(16, 32):
        k(f"v_mov_b32 v{r}, 0")
    consts(k)
    k("s_waitcnt lgkmcnt(0)")
    if first:
        k.srd(8, 4, 0, 2 * MB)
    else:
        k.srd(8, 6, WS_X2, 2 * MB)
    k.srd(12, 6, WS_CT, 4 * MB)
    k("s_lshl_b32 s16, s2, 3")
    k("s_add_u32 s16, s16, s3")
    k("s_lshl_b32 s16, s16, 10")
    k(f"s_add_u32 s17, s16, {MB}")
    k("v_lshlrev_b32 v3, 1, v1")
    for m in range(8):
        k(f"buffer_load_short_d16_hi v{z[m]}, v3, s[8:11], s16 offen offset:{128*m}")
        k(f"buffer_load_short_d16_hi v{z[m]+1}, v3, s[8:11], s17 offen offset:{128*m}")
    k("v_cvt_f32_u32 v4, v1")
    k("v_and_b32 v5, 7, v1")
    k("v_cvt_f32_u32 v5, v5")
    for q in range(1, 8):
        k.sincos(tw1[q], 4, q / 512, 6)
    for q in range(1, 8):
        k.sincos(tw2[q], 5, q / 64, 6)
    k("s_lshl_b32 s18, s3, 12")
    k("v_lshlrev_b32 v6, 3, v1")
    k("v_add_u32 v6, s18, v6")
    k("v_lshrrev_b32 v7, 3, v1")
    k("v_lshl_add_u32 v8, v7, 9, v6")
    k("v_and_b32 v9, 7, v1")
    k("v_xor_b32 v9, s3, v9")
    k("v_lshlrev_b32 v9, 3, v9")
    k("v_lshl_add_u32 v9, v7, 6, v9")
    k("v_add_u32 v9, s18, v9")
    k("v_add_u32 v9, 0x8000, v9")
    k("v_and_b32 v10, 7, v1")
    k("v_mul_u32_u24 v10, 4104, v10")
    k("v_lshl_add_u32 v10, v7, 6, v10")
    k("s_lshl_b32 s19, s3, 9")
    k("s_add_u32 s19, s19, 0x8000")
    k("v_add_u32 v10, s19, v10")
    k("v_and_b32 v11, 7, v1")
    k("v_lshlrev_b32 v11, 3, v11")
    k("v_lshl_add_u32 v11, v7, 13, v11")
    k("s_lshl_b32 s24, s3, 16")
    k("s_lshl_b32 s25, s2, 6")
    k("s_add_u32 s24, s24, s25")
    k("s_waitcnt vmcnt(0)")
    k.layernorm(z, t, 26)
    for m in range(8):
        k.round_pair(z[m], t[m])
    o, f = k.fft8(z, t, False, SH)
    for q in range(1, 8):
        k.cmulc(o[q], o[q], tw1[q], f[q & 1])
    for q in range(8):
        if q:
            k(f"v_xor_b32 v{12 + (q & 1)}, {64*q}, v6")
            a = 12 + (q & 1)
        else:
            a = 6
        k(f"ds_write_b64 v{a}, {k.P(o[q])} offset:{512*q}")
    x2 = f
    for q in range(8):
        if q:
            k(f"v_xor_b32 v{12 + (q & 1)}, {64*q}, v8")
            a = 12 + (q & 1)
        else:
            a = 8
        k(f"ds_read_b64 {k.P(x2[q])}, v{a}")
    k("s_waitcnt lgkmcnt(0)")
    o, f = k.fft8(x2, o, False, SH)
    for q in range(1, 8):
        k.cmulc(o[q], o[q], tw2[q], f[q & 1])
    for q in range(8):
        k(f"ds_write_b64 v9, {k.P(o[q])} offset:{512*q}")
    k("s_waitcnt lgkmcnt(0)")
    k("s_barrier")
    x3 = f
    for q in range(8):
        if q:
            k(f"v_xor_b32 v{12 + (q & 1)}, {8*q}, v10")
            a = 12 + (q & 1)
        else:
            a = 10
        k(f"ds_read_b64 {k.P(x3[q])}, v{a}")
    k("s_waitcnt lgkmcnt(0)")
    o, f = k.fft8(x3, o, False, SH)
    for q in range(8):
        k(f"buffer_store_dwordx2 {k.P(o[q])}, v11, s[12:15], s24 offen")
        if q < 7:
            k(f"s_add_u32 s24, s24, {64*8192}")
    k("s_endpgm")
    if first:
        k.put(pre)
        gen_prepass(k, end)
    k.put(end)
    k("s_endpgm")
    return k


def gen_prepass(k, end):
    k(f"s_load_dwordx4 s[8:11], s[0:1], {KA_WR}")
    k(f"s_load_dwordx2 s[12:13], s[0:1], {KA_W1}")
    k(f"s_load_dwordx2 s[14:15], s[0:1], {KA_W2}")
    k("s_sub_u32 s16, s2, 128")
    k("s_lshl_b32 s16, s16, 3")
    k("s_add_u32 s16, s16, s3")
    k("v_and_b32 v2, 31, v1")
    k("v_lshrrev_b32 v3, 5, v1")
    k("v_lshlrev_b32 v4, 4, v1")
    lw2 = k.label("w2"); lwt = k.label("wt")
    k("s_waitcnt lgkmcnt(0)")
    k("s_cmp_ge_u32 s16, 896")
    k(f"s_cbranch_scc1 {lw2}")
    k.srd(24, 12, 0, 512 * 3584)
    k.srd(28, 6, WS_W1F, 1792 * 1024)
    k("v_mul_u32_u24 v5, 3584, v3")
    k("v_lshl_add_u32 v5, v2, 1, v5")
    k("s_lshr_b32 s17, s16, 4")
    k("s_and_b32 s18, s16, 15")
    k("s_mul_i32 s18, s18, 14336")
    k("s_lshl_b32 s17, s17, 6")
    k("s_add_u32 s18, s18, s17")
    for e in range(2):
        for m in range(8):
            k(f"s_add_u32 s19, s18, {e*7168 + m*229376}")
            op = "buffer_load_short_d16_hi" if m & 1 else "buffer_load_ushort"
            k(f"{op} v{8 + 16*(m&1) + 4*e + m//2}, v5, s[24:27], s19 offen")
    k("s_lshl_b32 s17, s16, 11")
    k("s_waitcnt vmcnt(8)")
    for i in range(4):
        k(f"v_or_b32 v{8+i}, v{8+i}, v{24+i}")
    k("buffer_store_dwordx4 v[8:11], v4, s[28:31], s17 offen")
    k("s_waitcnt vmcnt(1)")
    for i in range(4, 8):
        k(f"v_or_b32 v{8+i}, v{8+i}, v{24+i}")
    k("buffer_store_dwordx4 v[12:15], v4, s[28:31], s17 offen offset:1024")
    k("s_endpgm")
    k.put(lw2)
    k("s_cmp_ge_u32 s16, 1792")
    k(f"s_cbranch_scc1 {lwt}")
    k.srd(24, 14, 0, 1792 * 1024)
    k.srd(28, 6, WS_W2F, 1792 * 1024)
    k("s_sub_u32 s16, s16, 896")
    k(f"s_mul_hi_u32 s17, s16, {(1 << 32) // 56 + 1}")
    k("s_mul_i32 s18, s17, 56")
    k("s_sub_u32 s18, s16, s18")
    k("v_and_b32 v5, 0x13, v2")
    k("v_bfe_u32 v6, v2, 2, 1")
    k("v_lshl_add_u32 v5, v6, 3, v5")
    k("v_bfe_u32 v6, v2, 3, 1")
    k("v_lshl_add_u32 v5, v6, 2, v5")
    k("v_lshlrev_b32 v5, 1, v5")
    k("v_lshl_add_u32 v5, v3, 12, v5")
    k("s_lshl_b32 s18, s18, 15")
    k("s_lshl_b32 s17, s17, 6")
    k("s_add_u32 s18, s18, s17")
    for e in range(2):
        for i in range(8):
            off = e * 16384 + (8 * (i >> 2) + (i & 3)) * 1024
            k(f"s_add_u32 s19, s18, {off}")
            op = "buffer_load_short_d16_hi" if i & 1 else "buffer_load_ushort"
            k(f"{op} v{8 + 16*(i&1) + 4*e + i//2}, v5, s[24:27], s19 offen")
    k("s_lshl_b32 s17, s16, 11")
    k("s_waitcnt vmcnt(8)")
    for i in range(4):
        k(f"v_or_b32 v{8+i}, v{8+i}, v{24+i}")
    k("buffer_store_dwordx4 v[8:11], v4, s[28:31], s17 offen")
    k("s_waitcnt vmcnt(1)")
    for i in range(4, 8):
        k(f"v_or_b32 v{8+i}, v{8+i}, v{24+i}")
    k("buffer_store_dwordx4 v[12:15], v4, s[28:31], s17 offen offset:1024")
    k("s_endpgm")
    k.put(lwt)
    k.srd(24, 8, 0, 2048 * 514)
    k.srd(32, 10, 0, 2048 * 514)
    k.srd(28, 6, WS_WT, 257 * 8192)
    k("s_sub_u32 s16, s16, 1792")
    k("s_lshr_b32 s17, s16, 8")
    k("s_and_b32 s18, s16, 255")
    k("s_lshr_b32 s19, s18, 5")
    k("s_bfe_u32 s36, s18, 0x30002")
    k("s_lshl_b32 s36, s36, 3")
    k("s_add_u32 s19, s19, s36")
    k("s_and_b32 s36, s18, 3")
    k("s_lshl_b32 s36, s36, 6")
    k("s_add_u32 s19, s19, s36")
    k("s_mul_i32 s19, s19, 514")
    k("s_lshl_b32 s36, s17, 7")
    k("s_add_u32 s19, s19, s36")
    k("v_lshlrev_b32 v5, 1, v1")
    for r in range(8):
        f3, f2hi = r & 3, r >> 2
        off = (256 * f2hi + 512 * f3) * 514
        k(f"s_add_u32 s36, s19, {off}")
        k(f"buffer_load_ushort v{8+r}, v5, s[24:27], s36 offen")
        k(f"buffer_load_short_d16_hi v{24+r}, v5, s[32:35], s36 offen")
    k("v_lshlrev_b32 v6, 13, v1")
    k("s_lshl_b32 s17, s17, 19")
    k("s_lshl_b32 s18, s18, 5")
    k("s_add_u32 s17, s17, s18")
    k("s_waitcnt vmcnt(0)")
    for i in range(8):
        k(f"v_or_b32 v{8+i}, v{8+i}, v{24+i}")
    k("buffer_store_dwordx4 v[8:11], v6, s[28:31], s17 offen")
    k("buffer_store_dwordx4 v[12:15], v6, s[28:31], s17 offen offset:16")
    k("s_endpgm")


def gen_p2(name):
    k = K(name)
    end = k.label("end")
    k("s_cmp_ge_u32 s2, 257")
    k(f"s_cbranch_scc1 {end}")
    k(f"s_load_dwordx2 s[6:7], s[0:1], {KA_WS}")
    k("v_lshrrev_b32 v2, 6, v0")
    k("v_lshlrev_b32 v1, 3, v0")
    z = [16 + 2 * i for i in range(8)]
    t = [32 + 2 * i for i in range(8)]
    T1 = [None] + [48 + 2 * i for i in range(7)]
    T2 = [None] + [62 + 2 * i for i in range(7)]
    T3 = [None] + [76 + 2 * i for i in range(7)]
    WR = 90
    k("v_readfirstlane_b32 s3, v2")
    consts(k)
    k("s_waitcnt lgkmcnt(0)")
    k.srd(8, 6, WS_CT, 4 * MB)
    k.srd(12, 6, WS_DT, 4 * MB)
    k.srd(24, 6, WS_WT, 257 * 8192)
    k("s_lshl_b32 s16, s2, 13")
    k("s_sub_u32 s17, 512, s2")
    k("s_and_b32 s17, s17, 511")
    k("s_lshl_b32 s17, s17, 13")
    k("s_add_u32 s18, s16, 4096")
    k("s_add_u32 s19, s17, 4096")
    for m in range(4):
        sa, sb = (16, 17) if m < 2 else (18, 19)
        k(f"buffer_load_dwordx2 {k.P(t[m])}, v1, s[8:11], s{sa} offen offset:{2048*(m&1)}")
        k(f"buffer_load_dwordx2 {k.P(t[4+m])}, v1, s[8:11], s{sb} offen offset:{2048*(m&1)}")
    k("v_lshlrev_b32 v3, 5, v0")
    k(f"buffer_load_dwordx4 v[{WR}:{WR+3}], v3, s[24:27], s16 offen")
    k(f"buffer_load_dwordx4 v[{WR+4}:{WR+7}], v3, s[24:27], s16 offen offset:16")
    k("v_cvt_f32_u32 v4, v0")
    k("v_and_b32 v5, 31, v0")
    k("v_cvt_f32_u32 v5, v5")
    k("v_and_b32 v6, 3, v0")
    k("v_cvt_f32_u32 v6, v6")
    for q in range(1, 8):
        k.sincos(T1[q], 4, q / 2048, 7)
    for q in range(1, 8):
        k.sincos(T2[q], 5, q / 256, 7)
    for q in range(1, 8):
        k.sincos(T3[q], 6, q / 32, 7)
    k("v_and_b32 v8, 31, v0")
    k("v_lshrrev_b32 v9, 5, v0")
    k("v_lshlrev_b32 v8, 3, v8")
    k("v_lshl_add_u32 v8, v9, 11, v8")
    k("s_lshl_b32 s28, s3, 12")
    k("s_add_u32 s28, s28, 0x8000")
    k("v_and_b32 v9, 31, v0")
    k("v_lshlrev_b32 v9, 3, v9")
    k("v_bfe_u32 v10, v0, 5, 1")
    k("v_lshl_add_u32 v9, v10, 11, v9")
    k("v_add_u32 v9, s28, v9")
    k("v_bfe_u32 v11, v0, 2, 3")
    k("v_lshl_add_u32 v10, v11, 8, v9")
    k("v_and_b32 v11, 63, v0")
    k("v_lshlrev_b32 v11, 3, v11")
    k("v_add_u32 v11, s28, v11")
    k("v_and_b32 v12, 3, v0")
    k("v_lshl_add_u32 v12, v12, 9, v11")
    k("s_waitcnt vmcnt(2)")
    for m in range(4):
        k(f"v_pk_add_f32 {k.P(z[m])}, {k.P(t[m])}, {k.P(t[4+m])} neg_hi:[0,1]")
        k(f"v_pk_add_f32 {k.P(z[4+m])}, {k.P(t[m])}, {k.P(t[4+m])} op_sel:[1,1] op_sel_hi:[0,0] neg_hi:[1,0]")

    def xr(base, x, i):
        if x == 0:
            return base
        r = 13 + (i & 1)
        k(f"v_xor_b32 v{r}, {x}, v{base}")
        return r

    o, f = k.fft8(z, t, False, SH)
    for q in range(1, 8):
        k.cmulc(o[q], o[q], T1[q], f[q & 1])
    for q in range(8):
        k(f"ds_write_b64 v1, {k.P(o[q])} offset:{2048*q}")
    k("s_waitcnt lgkmcnt(0)")
    k("s_barrier")
    for q in range(8):
        k(f"ds_read_b64 {k.P(f[q])}, v8 offset:{256*q}")
    k("s_waitcnt lgkmcnt(0)")
    o, f = k.fft8(f, o, False, SH)
    for q in range(1, 8):
        k.cmulc(o[q], o[q], T2[q], f[q & 1])
    for q in range(8):
        a = xr(9, 32 * q, q)
        k(f"ds_write_b64 v{a}, {k.P(o[q])} offset:{256*q}")
    for q in range(8):
        a = xr(10, 32 * q, q)
        k(f"ds_read_b64 {k.P(f[q])}, v{a}")
    k("s_waitcnt lgkmcnt(0)")
    o, f = k.fft8(f, o, False, SH)
    for q in range(1, 8):
        k.cmulc(o[q], o[q], T3[q], f[q & 1])
    for q in range(8):
        a = xr(11, 8 * (q & 3), q)
        k(f"ds_write_b64 v{a}, {k.P(o[q])} offset:{512*(q&3) + 2048*(q>>2)}")
    for q in range(8):
        a = xr(12, 8 * (q & 3), q)
        k(f"ds_read_b64 {k.P(f[q])}, v{a} offset:{2048*(q>>2)}")
    k("s_waitcnt lgkmcnt(0)")
    x = f; tt = o
    k.fft4(x[0:4], tt[0:4], False)
    k.fft4(x[4:8], tt[4:8], False)
    k("s_waitcnt vmcnt(0)")
    for q in range(8):
        w = tt[q]
        k(f"v_lshlrev_b32 v{w}, 16, v{WR+q}")
        k(f"v_and_b32 v{w+1}, 0xffff0000, v{WR+q}")
    for q in range(8):
        k.cmul(x[q], x[q], tt[q], 4 + 2 * (q & 1))
    k.fft4(x[0:4], tt[0:4], True)
    k.fft4(x[4:8], tt[4:8], True)
    for q in range(8):
        a = xr(12, 8 * (q & 3), q)
        k(f"ds_write_b64 v{a}, {k.P(x[q])} offset:{2048*(q>>2)}")
    for q in range(8):
        a = xr(11, 8 * (q & 3), q)
        k(f"ds_read_b64 {k.P(tt[q])}, v{a} offset:{512*(q&3) + 2048*(q>>2)}")
    k("s_waitcnt lgkmcnt(0)")
    for q in range(1, 8):
        k.cmul(tt[q], tt[q], T3[q], 4 + 2 * (q & 1))
    o, f = k.fft8(tt, x, True, SH)
    for q in range(8):
        a = xr(10, 32 * q, q)
        k(f"ds_write_b64 v{a}, {k.P(o[q])}")
    for q in range(8):
        a = xr(9, 32 * q, q)
        k(f"ds_read_b64 {k.P(f[q])}, v{a} offset:{256*q}")
    k("s_waitcnt lgkmcnt(0)")
    for q in range(1, 8):
        k.cmul(f[q], f[q], T2[q], 4 + 2 * (q & 1))
    o, f = k.fft8(f, o, True, SH)
    for q in range(8):
        k(f"ds_write_b64 v8, {k.P(o[q])} offset:{16384 + 256*q}")
    k("s_waitcnt lgkmcnt(0)")
    k("s_barrier")
    for q in range(8):
        k(f"ds_read_b64 {k.P(f[q])}, v1 offset:{16384 + 2048*q}")
    k("s_waitcnt lgkmcnt(0)")
    for q in range(1, 8):
        k.cmul(f[q], f[q], T1[q], 4 + 2 * (q & 1))
    o, f = k.fft8(f, o, True, SH)
    special = k.label("spec")
    k("s_and_b32 s29, s2, 255")
    k("s_cmp_eq_u32 s29, 0")
    k(f"s_cbranch_scc1 {special}")
    for m in range(4):
        k.caddi(f[m], o[m], o[m + 4])
        k(f"v_pk_add_f32 {k.P(f[4+m])}, {k.P(o[m])}, {k.P(o[m+4])} op_sel:[0,1] op_sel_hi:[1,0] neg_hi:[1,0]")
    for m in range(4):
        sa, sb = (16, 17) if m < 2 else (18, 19)
        k(f"buffer_store_dwordx2 {k.P(f[m])}, v1, s[12:15], s{sa} offen offset:{2048*(m&1)}")
        k(f"buffer_store_dwordx2 {k.P(f[4+m])}, v1, s[12:15], s{sb} offen offset:{2048*(m&1)}")
    k("s_endpgm")
    k.put(special)
    for m in range(4):
        k(f"v_mov_b32 v{o[m]+1}, v{o[m+4]}")
    for m in range(4):
        sa = 16 if m < 2 else 18
        k(f"buffer_store_dwordx2 {k.P(o[m])}, v1, s[12:15], s{sa} offen offset:{2048*(m&1)}")
    k.put(end)
    k("s_endpgm")
    return k


def gen_p3(name, first):
    k = K(name)
    end = k.label("end")
    k("s_cmp_ge_u32 s2, 128")
    k(f"s_cbranch_scc1 {end}")
    k(f"s_load_dwordx2 s[6:7], s[0:1], {KA_WS}")
    if first:
        k(f"s_load_dwordx2 s[4:5], s[0:1], {KA_AX}")
    k("v_lshrrev_b32 v2, 6, v0")
    k("v_and_b32 v1, 63, v0")
    z = [16 + 2 * i for i in range(8)]
    t = [32 + 2 * i for i in range(8)]
    tw1 = [48 + 2 * i for i in range(8)]
    tw2 = [None] + [64 + 2 * i for i in range(7)]
    X = [80 + 2 * i for i in range(8)]
    k("v_readfirstlane_b32 s3, v2")
    for r in range(80, 96):
        k(f"v_mov_b32 v{r}, 0")
    consts(k)
    k("s_waitcnt lgkmcnt(0)")
    if first:
        k.srd(8, 4, 0, 2 * MB)
    else:
        k.srd(8, 6, WS_X2, 2 * MB)
    k.srd(12, 6, WS_DT, 4 * MB)
    k.srd(32, 6, WS_X1 if first else WS_X3, 2 * MB)
    k.srd(36, 6, WS_AP, 2 * MB)
    k("v_lshrrev_b32 v7, 3, v1")
    k("v_and_b32 v11, 7, v1")
    k("v_lshlrev_b32 v11, 3, v11")
    k("v_lshl_add_u32 v11, v7, 13, v11")
    k("s_lshl_b32 s24, s3, 16")
    k("s_lshl_b32 s25, s2, 6")
    k("s_add_u32 s24, s24, s25")
    for q in range(8):
        k(f"buffer_load_dwordx2 {k.P(z[q])}, v11, s[12:15], s24 offen")
        if q < 7:
            k(f"s_add_u32 s24, s24, {64*8192}")
    k("s_lshl_b32 s16, s2, 3")
    k("s_add_u32 s16, s16, s3")
    k("s_lshl_b32 s16, s16, 10")
    k(f"s_add_u32 s17, s16, {MB}")
    k("v_lshlrev_b32 v3, 1, v1")
    for m in range(8):
        k(f"buffer_load_short_d16_hi v{X[m]}, v3, s[8:11], s16 offen offset:{128*m}")
        k(f"buffer_load_short_d16_hi v{X[m]+1}, v3, s[8:11], s17 offen offset:{128*m}")
    k("v_cvt_f32_u32 v5, v2")
    for q in range(1, 8):
        k.sincos(tw2[q], 5, q / 64, 6)
    k("v_and_b32 v4, 7, v1")
    for q in range(8):
        k(f"v_add_u32 v5, {8*q}, v4")
        k("v_mul_u32_u24 v5, v5, v7")
        k("v_cvt_f32_u32 v5, v5")
        k.sincos(tw1[q], 5, 1 / 512, 6)
    k("s_lshl_b32 s18, s3, 12")
    k("v_lshlrev_b32 v6, 3, v1")
    k("v_add_u32 v6, s18, v6")
    k("v_lshl_add_u32 v8, v7, 9, v6")
    k("v_and_b32 v9, 7, v1")
    k("v_xor_b32 v9, s3, v9")
    k("v_lshlrev_b32 v9, 3, v9")
    k("v_lshl_add_u32 v9, v7, 6, v9")
    k("v_add_u32 v9, s18, v9")
    k("v_add_u32 v9, 0x8000, v9")
    k("v_and_b32 v10, 7, v1")
    k("v_mul_u32_u24 v10, 4104, v10")
    k("v_lshl_add_u32 v10, v7, 6, v10")
    k("s_lshl_b32 s19, s3, 9")
    k("s_add_u32 s19, s19, 0x8000")
    k("v_add_u32 v10, s19, v10")
    k(f"s_mov_b32 s40, {f32(2.0**-21)}")
    k(f"s_mov_b32 s41, {f32(2.0**-21)}")
    k("s_waitcnt vmcnt(16)")
    o, f = k.fft8(z, t, True, SH)
    for q in range(1, 8):
        k.cmul(o[q], o[q], tw2[q], f[q & 1])
    for q in range(8):
        if q:
            k(f"v_xor_b32 v{12 + (q & 1)}, {8*q}, v10")
            a = 12 + (q & 1)
        else:
            a = 10
        k(f"ds_write_b64 v{a}, {k.P(o[q])}")
    k("s_waitcnt lgkmcnt(0)")
    k("s_barrier")
    for q in range(8):
        k(f"ds_read_b64 {k.P(f[q])}, v9 offset:{512*q}")
    k("s_waitcnt lgkmcnt(0)")
    o, f = k.fft8(f, o, True, SH)
    for q in range(8):
        k.cmul(o[q], o[q], tw1[q], f[q & 1])
    for q in range(8):
        if q:
            k(f"v_xor_b32 v{12 + (q & 1)}, {64*q}, v8")
            a = 12 + (q & 1)
        else:
            a = 8
        k(f"ds_write_b64 v{a}, {k.P(o[q])}")
    for q in range(8):
        if q:
            k(f"v_xor_b32 v{12 + (q & 1)}, {64*q}, v6")
            a = 12 + (q & 1)
        else:
            a = 6
        k(f"ds_read_b64 {k.P(f[q])}, v{a} offset:{512*q}")
    k("s_waitcnt lgkmcnt(0)")
    o, f = k.fft8(f, o, True, SH)
    k("s_waitcnt vmcnt(0)")
    for m in range(8):
        k.cscale(o[m], o[m], 40)
        k.round_pair(o[m], f[m])
    for m in range(8):
        k.cadd(o[m], o[m], X[m])
        k.round_pair(o[m], X[m])
    for m in range(8):
        k(f"buffer_store_short v{X[m]}, v3, s[32:35], s16 offen offset:{128*m}")
        k(f"buffer_store_short_d16_hi v{X[m]}, v3, s[32:35], s17 offen offset:{128*m}")
    k.layernorm(o, f, 26)
    for m in range(4):
        k(f"v_cvt_pk_bf16_f32 v{48+m}, v{o[2*m]}, v{o[2*m+1]}")
        k(f"v_cvt_pk_bf16_f32 v{52+m}, v{o[2*m]+1}, v{o[2*m+1]+1}")
    k("v_lshlrev_b32 v4, 4, v1")
    k("buffer_store_dwordx4 v[48:51], v4, s[36:39], s16 offen")
    k("buffer_store_dwordx4 v[52:55], v4, s[36:39], s17 offen")
    k.put(end)
    k("s_endpgm")
    return k


def build(stages, path):
    ks = {}
    launches = []

    def add(kern, grid, block, lds, vgpr, **kw):
        if kern.name not in ks:
            ks[kern.name] = (kern, vgpr, kw)
        launches.append(f"; @launch kernel={kern.name} grid=({grid},1,1) block=({block},1,1) lds={lds}")

    for st in stages:
        if st == "p1a":
            add(gen_p1("p1a_kernel", True), 128 + N_PRE, 512, 65536, 80)
        elif st == "p1b":
            add(gen_p1("p1b_kernel", False), 128, 512, 65536, 80)
        elif st in ("p2",):
            add(gen_p2("p2_kernel"), 257, 256, 49152, 104)
        elif st == "p3a":
            add(gen_p3("p3a_kernel", True), 128, 512, 65536, 96)
        elif st == "p3b":
            add(gen_p3("p3b_kernel", False), 128, 512, 65536, 96)
        else:
            import gen_gemm
            gen_gemm.add_stage(st, add)
    hdr = ["; generated by dev/gen.py"] + launches
    out = "\n".join(hdr) + "\n" + '.amdgcn_target "amdgcn-amd-amdhsa--gfx950"\n.text\n'
    for kern, vg, kw in ks.values():
        out += kern.text()
    out += '.section .rodata,"a"\n'
    for kern, vg, kw in ks.values():
        out += kern.desc(vg, **kw)
    open(path, "w").write(out)


if __name__ == "__main__":
    build(sys.argv[2].split(","), sys.argv[1])
```

```python
import math
from gen import *

C1 = -2.0 * math.sqrt(2.0 / math.pi) * math.log2(math.e)
C2 = C1 * 0.044715


def gen_g1(name):
    k = K(name)
    end = k.label("end")
    k("s_cmp_ge_u32 s2, 224")
    k(f"s_cbranch_scc1 {end}")
    k.stamp()
    k(f"s_load_dwordx2 s[6:7], s[0:1], {KA_WS}")
    k(f"s_load_dwordx2 s[4:5], s[0:1], {KA_B1}")
    k("v_lshrrev_b32 v2, 6, v0")
    k("v_and_b32 v1, 63, v0")
    k("v_readfirstlane_b32 s3, v2")
    k("s_lshr_b32 s17, s2, 4")
    k("s_and_b32 s16, s2, 7")
    k("s_lshl_b32 s16, s16, 1")
    k("s_bfe_u32 s18, s2, 0x10003")
    k("s_add_u32 s16, s16, s18")
    k("v_lshlrev_b32 v3, 4, v1")
    k("v_lshrrev_b32 v4, 3, v1")
    k("v_lshrrev_b32 v5, 4, v1")
    k("v_and_b32 v6, 7, v1")
    k("v_xor_b32 v7, v6, v5")
    k("v_lshlrev_b32 v7, 4, v7")
    k("v_lshl_add_u32 v7, v4, 10, v7")
    k("v_xor_b32 v8, 64, v7")
    k("s_and_b32 s18, s3, 1")
    k("s_lshr_b32 s19, s3, 1")
    k("s_lshl_b32 s34, s17, 2")
    k("s_add_u32 s34, s34, s19")
    k("s_lshl_b32 s34, s34, 15")
    k("s_lshl_b32 s35, s18, 11")
    k("s_add_u32 s34, s34, s35")
    k("s_lshl_b32 s35, s16, 3")
    k("s_add_u32 s35, s35, s3")
    k("s_lshl_b32 s35, s35, 14")
    k("s_lshl_b32 s36, s3, 11")
    k("s_waitcnt lgkmcnt(0)")
    k.srd(8, 6, WS_W1F, 1792 * 1024)
    k.srd(12, 6, WS_AP, 2 * MB)

    def dma_ops(stage):
        slot = (stage & 3) * 32768
        ops = []
        ops.append([f"s_add_u32 m0, s36, {slot}", f"s_add_u32 s37, s34, {stage * 4096}",
                    f"buffer_load_dwordx4 v3, s[8:11], s37 offen lds"])
        ops.append([f"buffer_load_dwordx4 v3, s[8:11], s37 offen offset:1024 lds"])
        ops.append([f"s_add_u32 m0, s36, {slot + 16384}", f"s_add_u32 s37, s35, {stage * 128}",
                    f"buffer_load_dwordx4 v7, s[12:15], s37 offen lds"])
        ops.append([f"s_add_u32 s37, s35, {stage * 128 + 7168}",
                    f"buffer_load_dwordx4 v8, s[12:15], s37 offen offset:1024 lds"])
        return ops

    for st in range(3):
        for op in dma_ops(st):
            for l in op:
                k(l)
    k.srd(24, 4, 0, 3584)
    k.srd(28, 6, WS_HF, 2048 * 3584)
    k("v_lshrrev_b32 v9, 5, v1")
    k("v_lshlrev_b32 v10, 3, v9")
    k("s_lshl_b32 s32, s17, 8")
    k("s_lshl_b32 s33, s18, 7")
    k("s_add_u32 s32, s32, s33")
    BI = 96
    k("s_lshl_b32 s38, s18, 13")
    k("v_add_u32 v11, s38, v3")
    k("v_add_u32 v12, 0x10000, v11")
    k("v_and_b32 v13, 31, v1")
    k("v_bfe_u32 v14, v1, 1, 3")
    k("v_xor_b32 v14, v14, v9")
    k("v_lshlrev_b32 v14, 4, v14")
    k("v_lshl_add_u32 v13, v13, 7, v14")
    k("s_lshl_b32 s38, s19, 12")
    k("s_add_u32 s38, s38, 16384")
    k("v_add_u32 v13, s38, v13")
    for kb in range(4):
        k(f"v_xor_b32 v{16+kb}, {32*kb}, v13")
        k(f"v_add_u32 v{20+kb}, 0x10000, v{16+kb}")
    ACC = 32
    for r in range(32):
        k(f"v_mov_b32 v{ACC + r}, 0")
    FR = [64, 80]

    def reads(n):
        st, kb = n >> 2, n & 3
        sl = st & 3
        o = (sl & 1) * 32768
        va = 11 if sl < 2 else 12
        vb = (16 if sl < 2 else 20) + kb
        f = FR[n & 1]
        for a in range(2):
            k(f"ds_read_b128 v[{f + 4*a}:{f + 4*a + 3}], v{va} offset:{o + a*4096 + kb*1024}")
        k(f"ds_read_b128 v[{f + 8}:{f + 11}], v{vb} offset:{o}")

    pend = []

    def mfmas(n):
        f = FR[n & 1]
        for a in range(2):
            c = ACC + 16 * a
            k(f"v_mfma_f32_32x32x16_bf16 v[{c}:{c+15}], v[{f+4*a}:{f+4*a+3}], v[{f+8}:{f+11}], v[{c}:{c+15}]")
            if pend:
                for l in pend.pop(0):
                    k(l)

    nbias = [0]

    def sync(st):
        outst = min(2, 7 - st) * 4 + nbias[0]
        k(f"s_waitcnt vmcnt({outst})")
        k("s_barrier")
        k.stamp()
        if st + 3 <= 7:
            pend.extend(dma_ops(st + 3))
        if st == 5:
            for a in range(2):
                for g in range(4):
                    pend.append([f"buffer_load_dwordx2 v[{BI + 8*a + 2*g}:{BI + 8*a + 2*g + 1}], v10, s[24:27], s32 offen offset:{64*a + 16*g}"])
            nbias[0] = 8

    sync(0)
    reads(0)
    for n in range(32):
        k("s_waitcnt lgkmcnt(0)")
        if n + 1 < 32:
            if (n + 1) & 3 == 0:
                assert not pend
                sync((n + 1) >> 2)
            reads(n + 1)
        mfmas(n)
    k.stamp()
    CC = 112
    k(f"v_mov_b32 v{CC}, {f32(C1)}"); k(f"v_mov_b32 v{CC+1}, {f32(C1)}")
    k(f"s_mov_b32 s42, {f32(C2)}"); k(f"s_mov_b32 s43, {f32(C2)}")
    k(f"s_mov_b32 s44, 1.0"); k(f"s_mov_b32 s45, 1.0")
    k("s_lshl_b32 s46, s16, 2")
    k("s_add_u32 s46, s46, s19")
    k("s_mul_i32 s46, s46, 112")
    k("s_lshl_b32 s47, s17, 3")
    k("s_add_u32 s46, s46, s47")
    k("s_lshl_b32 s47, s18, 2")
    k("s_add_u32 s46, s46, s47")
    k("s_lshl_b32 s46, s46, 10")
    k("s_waitcnt vmcnt(0)")
    BF = 64
    k("s_nop 4")
    for i in range(16):
        k(f"v_lshlrev_b32 v{BF + 2*i}, 16, v{BI + i}")
        k(f"v_and_b32 v{BF + 2*i + 1}, 0xffff0000, v{BI + i}")
    T = 96
    for a in range(2):
        c = ACC + 16 * a
        ob = 116 + 8 * a
        for h in range(2):
            ps = range(4 * h, 4 * h + 4)
            X = lambda p: c + 2 * p
            TT = lambda p: T + 2 * (p & 3)
            for p in ps: k(f"v_cvt_pk_bf16_f32 v{TT(p)}, v{X(p)}, v{X(p)+1}")
            for p in ps:
                k(f"v_lshlrev_b32 v{X(p)}, 16, v{TT(p)}"); k(f"v_and_b32 v{X(p)+1}, 0xffff0000, v{TT(p)}")
            for p in ps: k(f"v_pk_add_f32 {k.P(X(p))}, {k.P(X(p))}, {k.P(BF + 16*a + 2*p)}")
            for p in ps: k(f"v_cvt_pk_bf16_f32 v{TT(p)}, v{X(p)}, v{X(p)+1}")
            for p in ps:
                k(f"v_lshlrev_b32 v{X(p)}, 16, v{TT(p)}"); k(f"v_and_b32 v{X(p)+1}, 0xffff0000, v{TT(p)}")
            for p in ps: k(f"v_pk_mul_f32 {k.P(TT(p))}, {k.P(X(p))}, {k.P(X(p))}")
            for p in ps: k(f"v_pk_fma_f32 {k.P(TT(p))}, {k.P(TT(p))}, s[42:43], {k.P(CC)}")
            for p in ps: k(f"v_pk_mul_f32 {k.P(TT(p))}, {k.P(TT(p))}, {k.P(X(p))}")
            for p in ps:
                k(f"v_exp_f32 v{TT(p)}, v{TT(p)}"); k(f"v_exp_f32 v{TT(p)+1}, v{TT(p)+1}")
            k("s_nop 0")
            for p in ps: k(f"v_pk_add_f32 {k.P(TT(p))}, {k.P(TT(p))}, s[44:45]")
            for p in ps:
                k(f"v_rcp_f32 v{TT(p)}, v{TT(p)}"); k(f"v_rcp_f32 v{TT(p)+1}, v{TT(p)+1}")
            k("s_nop 0")
            for p in ps: k(f"v_pk_mul_f32 {k.P(X(p))}, {k.P(X(p))}, {k.P(TT(p))}")
            for p in ps: k(f"v_cvt_pk_bf16_f32 v{ob + p}, v{X(p)}, v{X(p)+1}")
            k(f"buffer_store_dwordx4 v[{ob+4*h}:{ob+4*h+3}], v3, s[28:31], s46 offen offset:{2048*a + 1024*h}")
    k.stamp()
    k.dump_stamps(3)
    k.put(end)
    k("s_endpgm")
    return k


def gen_g2(name, first):
    k = K(name)
    end = k.label("end")
    k("s_cmp_ge_u32 s2, 256")
    k(f"s_cbranch_scc1 {end}")
    k.stamp()
    k(f"s_load_dwordx2 s[6:7], s[0:1], {KA_WS}")
    k(f"s_load_dwordx2 s[4:5], s[0:1], {KA_B2}")
    if not first:
        k(f"s_load_dwordx2 s[48:49], s[0:1], {KA_OUT}")
    k("v_lshrrev_b32 v2, 6, v0")
    k("v_and_b32 v1, 63, v0")
    k("v_readfirstlane_b32 s3, v2")
    k("s_bfe_u32 s17, s2, 0x30003")
    k("s_lshr_b32 s16, s2, 6")
    k("s_lshl_b32 s16, s16, 3")
    k("s_and_b32 s18, s2, 7")
    k("s_add_u32 s16, s16, s18")
    k("v_lshlrev_b32 v3, 4, v1")
    k("s_waitcnt lgkmcnt(0)")
    k.srd(8, 6, WS_W2F, 1792 * 1024)
    k.srd(12, 6, WS_HF, 2048 * 3584)
    k.srd(24, 4, 0, 1024)
    k.srd(28, 6, WS_X1 if first else WS_X3, 2 * MB)
    if first:
        k.srd(32, 6, WS_X2, 2 * MB)
    else:
        k.srd(32, 48, 0, 2 * MB)
    k("s_mul_i32 s36, s3, 28672")
    k("s_mul_i32 s37, s17, 229376")
    k("s_add_u32 s37, s37, s36")
    k(f"s_add_u32 s38, s37, {112*1024}")
    k("s_mul_i32 s39, s16, 229376")
    k("s_add_u32 s39, s39, s36")
    k(f"s_add_u32 s40, s39, {112*1024}")
    PD = 8
    NS = 28
    ACC = 16
    FB = 80

    def loads(i):
        f = FB + 16 * (i % PD)
        off = 1024 * (i & 3)
        for j, (srd, sb) in enumerate([(8, 37), (8, 38), (12, 39), (12, 40)]):
            k(f"buffer_load_dwordx4 v[{f+4*j}:{f+4*j+3}], v3, s[{srd}:{srd+3}], s{sb} offen offset:{off}")
        if i & 3 == 3:
            for sb in (37, 38, 39, 40):
                k(f"s_add_u32 s{sb}, s{sb}, 4096")

    for i in range(PD):
        loads(i)
    k("s_lshr_b32 s41, s3, 1")
    k("s_and_b32 s42, s3, 1")
    k("v_and_b32 v4, 31, v1")
    k("v_lshrrev_b32 v5, 5, v1")
    k("v_lshlrev_b32 v6, 4, v5")
    k("v_lshl_add_u32 v7, v4, 10, v6")
    k("s_lshl_b32 s43, s17, 1")
    k("s_add_u32 s43, s43, s41")
    k("s_lshl_b32 s43, s43, 6")
    k("s_lshl_b32 s44, s16, 1")
    k("s_add_u32 s44, s44, s42")
    k("s_lshl_b32 s44, s44, 15")
    k("s_add_u32 s44, s44, s43")
    EX = 208
    for r in range(64):
        k(f"v_mov_b32 v{ACC + r}, 0")
    for i in range(NS):
        rem = min(PD, NS - i) - 1
        k(f"s_waitcnt vmcnt({4*rem + (4 if i >= NS - PD + 1 else 0)})") if False else None
        extra = 4 if i > NS - PD else 0
        k(f"s_waitcnt vmcnt({4*rem + extra})")
        if i % 4 == 0: k.stamp()
        f = FB + 16 * (i % PD)
        for a in range(2):
            for b in range(2):
                c = ACC + 16 * (2 * a + b)
                k(f"v_mfma_f32_32x32x16_bf16 v[{c}:{c+15}], v[{f+4*a}:{f+4*a+3}], v[{f+8+4*b}:{f+8+4*b+3}], v[{c}:{c+15}]")
        if i + PD < NS:
            loads(i + PD)
        elif i + PD == NS:
            k(f"buffer_load_dwordx4 v[{EX}:{EX+3}], v7, s[28:31], s44 offen")
            k(f"buffer_load_dwordx4 v[{EX+4}:{EX+7}], v7, s[28:31], s44 offen offset:32")
            k(f"buffer_load_dwordx4 v[{EX+8}:{EX+11}], v6, s[24:27], s43 offen")
            k(f"buffer_load_dwordx4 v[{EX+12}:{EX+15}], v6, s[24:27], s43 offen offset:32")
    k("s_lshl_b32 s45, s3, 14")
    k("v_add_u32 v8, s45, v3")
    k("s_lshl_b32 s45, s3, 12")
    k("v_add_u32 v9, s45, v3")
    k("s_nop 7")
    k("s_nop 3")
    for q in range(4):
        for j in range(4):
            c = ACC + 16 * q + 4 * j
            k(f"ds_write_b128 v8, v[{c}:{c+3}] offset:{4096*q + 1024*j}")
    k("s_waitcnt lgkmcnt(0)")
    k("s_barrier")
    k.stamp()
    R = 80
    for w in range(4):
        for j in range(4):
            k(f"ds_read_b128 v[{R + 16*w + 4*j}:{R + 16*w + 4*j + 3}], v9 offset:{16384*w + 1024*j}")
    k("s_waitcnt lgkmcnt(0)")
    for p in range(8):
        k(f"v_pk_add_f32 {k.P(R + 2*p)}, {k.P(R + 2*p)}, {k.P(R + 16 + 2*p)}")
        k(f"v_pk_add_f32 {k.P(R + 32 + 2*p)}, {k.P(R + 32 + 2*p)}, {k.P(R + 48 + 2*p)}")
    for p in range(8):
        k(f"v_pk_add_f32 {k.P(R + 2*p)}, {k.P(R + 2*p)}, {k.P(R + 32 + 2*p)}")
    k("s_waitcnt vmcnt(0)")
    U = 16
    for p in range(8):
        x = R + 2 * p
        k.round_pair(x, U)
        k(f"v_lshlrev_b32 v{U+2}, 16, v{EX + 8 + p}")
        k(f"v_and_b32 v{U+3}, 0xffff0000, v{EX + 8 + p}")
        k(f"v_pk_add_f32 {k.P(x)}, {k.P(x)}, {k.P(U+2)}")
        k.round_pair(x, U)
        k(f"v_lshlrev_b32 v{U+2}, 16, v{EX + p}")
        k(f"v_and_b32 v{U+3}, 0xffff0000, v{EX + p}")
        k(f"v_pk_add_f32 {k.P(x)}, {k.P(x)}, {k.P(U+2)}")
        k(f"v_cvt_pk_bf16_f32 v{24 + p}, v{x}, v{x+1}")
    k("buffer_store_dwordx4 v[24:27], v7, s[32:35], s44 offen")
    k("buffer_store_dwordx4 v[28:31], v7, s[32:35], s44 offen offset:32")
    k.stamp()
    k.dump_stamps(4)
    k.put(end)
    k("s_endpgm")
    return k


def add_stage(st, add):
    if st == "g1":
        add(gen_g1("g1_kernel"), 224, 512, 131072, 132)
    elif st == "g2a":
        add(gen_g2("g2a_kernel", True), 256, 256, 65536, 224)
    elif st == "g2b":
        add(gen_g2("g2b_kernel", False), 256, 256, 65536, 224)
    else:
        raise SystemExit("unknown stage " + st)
```

```python
import sys, struct, math

MB = 1 << 20
import os
STAMPS = bool(os.environ.get("STAMPS"))
WS_CT = 0
WS_DT = 4 * MB
WS_AP = 8 * MB
WS_X1 = 10 * MB
WS_X2 = 12 * MB
WS_X3 = 14 * MB
WS_HF = 16 * MB
WS_W1F = 24 * MB
WS_W2F = 26 * MB
WS_WT = 28 * MB

KA_AX, KA_WR, KA_WI, KA_BX, KA_W1, KA_B1, KA_W2, KA_B2, KA_OUT, KA_DBG, KA_WS = [8 * i for i in range(11)]


def f32(x):
    return "0x%08x" % struct.unpack("<I", struct.pack("<f", x))[0]


class K:
    def __init__(self, name):
        self.name = name
        self.L = []
        self.nlab = 0

    def __call__(self, s):
        self.L.append("  " + s)

    def label(self, base):
        self.nlab += 1
        return f"L_{self.name}_{base}_{self.nlab}"

    def put(self, lab):
        self.L.append(lab + ":")

    @staticmethod
    def P(r):
        return f"v[{r}:{r+1}]"

    def cadd(self, d, a, b):
        self(f"v_pk_add_f32 {self.P(d)}, {self.P(a)}, {self.P(b)}")

    def csub(self, d, a, b):
        self(f"v_pk_add_f32 {self.P(d)}, {self.P(a)}, {self.P(b)} neg_lo:[0,1] neg_hi:[0,1]")

    def caddi(self, d, a, b):
        self(f"v_pk_add_f32 {self.P(d)}, {self.P(a)}, {self.P(b)} op_sel:[0,1] op_sel_hi:[1,0] neg_lo:[0,1]")

    def csubi(self, d, a, b):
        self(f"v_pk_add_f32 {self.P(d)}, {self.P(a)}, {self.P(b)} op_sel:[0,1] op_sel_hi:[1,0] neg_hi:[0,1]")

    def cmul(self, d, a, w, t):
        self(f"v_pk_mul_f32 {self.P(t)}, {self.P(a)}, {self.P(w)} op_sel:[0,0] op_sel_hi:[0,1]")
        self(f"v_pk_fma_f32 {self.P(d)}, {self.P(a)}, {self.P(w)}, {self.P(t)} op_sel:[1,1,0] op_sel_hi:[1,0,1] neg_lo:[1,0,0]")

    def cmulc(self, d, a, w, t):
        self(f"v_pk_mul_f32 {self.P(t)}, {self.P(a)}, {self.P(w)} op_sel:[0,0] op_sel_hi:[1,0]")
        self(f"v_pk_fma_f32 {self.P(d)}, {self.P(a)}, {self.P(w)}, {self.P(t)} op_sel:[1,1,0] op_sel_hi:[0,1,1] neg_hi:[1,0,0]")

    def cscale(self, d, a, sp):
        self(f"v_pk_mul_f32 {self.P(d)}, {self.P(a)}, s[{sp}:{sp+1}]")

    def fft8(self, x, t, inv, SH):
        mi = self.caddi if inv else self.csubi
        pi = self.csubi if inv else self.caddi
        for i in range(4):
            self.cadd(t[i], x[i], x[i + 4])
            self.csub(t[i + 4], x[i], x[i + 4])
        mi(x[5], t[5], t[5])
        pi(x[7], t[7], t[7])
        self.cadd(x[0], t[0], t[2])
        self.csub(x[1], t[0], t[2])
        self.cscale(x[5], x[5], SH)
        self.cscale(x[7], x[7], SH + 2)
        self.cadd(x[2], t[1], t[3])
        self.csub(x[3], t[1], t[3])
        mi(x[4], t[4], t[6])
        pi(x[6], t[4], t[6])
        self.cadd(t[5], x[5], x[7])
        self.csub(t[7], x[5], x[7])
        self.cadd(t[0], x[0], x[2])
        self.csub(t[2], x[0], x[2])
        mi(t[1], x[1], x[3])
        pi(t[3], x[1], x[3])
        self.cadd(t[4], x[4], t[5])
        self.csub(t[6], x[4], t[5])
        mi(x[5], x[6], t[7])
        pi(x[7], x[6], t[7])
        out = [t[0], t[4], t[1], x[5], t[2], t[6], t[3], x[7]]
        free = [x[0], x[1], x[2], x[3], x[4], x[6], t[5], t[7]]
        return out, free

    def fft4(self, x, t, inv):
        mi = self.caddi if inv else self.csubi
        pi = self.csubi if inv else self.caddi
        self.cadd(t[0], x[0], x[2])
        self.csub(t[1], x[0], x[2])
        self.cadd(t[2], x[1], x[3])
        self.csub(t[3], x[1], x[3])
        self.cadd(x[0], t[0], t[2])
        self.csub(x[2], t[0], t[2])
        mi(x[1], t[1], t[3])
        pi(x[3], t[1], t[3])
        return x, t

    def sincos(self, dst, vsrc_f, scale, tmp):
        self(f"v_mul_f32 v{tmp}, {f32(scale)}, v{vsrc_f}")
        self(f"v_cos_f32 v{dst}, v{tmp}")
        self(f"v_sin_f32 v{dst+1}, v{tmp}")

    def wave_reduce2(self, a):
        self("s_nop 1")
        for m in ["row_shr:1 row_mask:0xf bank_mask:0xf bound_ctrl:0", "row_shr:2 row_mask:0xf bank_mask:0xf bound_ctrl:0",
                  "row_shr:4 row_mask:0xf bank_mask:0xf bound_ctrl:0", "row_shr:8 row_mask:0xf bank_mask:0xf bound_ctrl:0",
                  "row_bcast:15 row_mask:0xa bank_mask:0xf", "row_bcast:31 row_mask:0xc bank_mask:0xf"]:
            self(f"v_add_f32_dpp v{a}, v{a}, v{a} {m}")
            self(f"v_add_f32_dpp v{a+1}, v{a+1}, v{a+1} {m}")
            self("s_nop 0")

    def round_pair(self, p, tmp):
        self(f"v_cvt_pk_bf16_f32 v{tmp}, v{p}, v{p+1}")
        self(f"v_lshlrev_b32 v{p}, 16, v{tmp}")
        self(f"v_and_b32 v{p+1}, 0xffff0000, v{tmp}")

    def layernorm(self, z, t, SM):
        self.cadd(t[0], z[0], z[1]); self.cadd(t[1], z[2], z[3]); self.cadd(t[2], z[4], z[5]); self.cadd(t[3], z[6], z[7])
        self.cadd(t[0], t[0], t[1]); self.cadd(t[2], t[2], t[3]); self.cadd(t[0], t[0], t[2])
        a = t[0]
        self.wave_reduce2(a)
        self(f"v_mul_f32 v{a}, {f32(1/512)}, v{a}")
        self(f"v_mul_f32 v{a+1}, {f32(1/512)}, v{a+1}")
        b = t[1]
        self(f"v_cvt_pk_bf16_f32 v{b}, v{a}, v{a+1}")
        self(f"v_and_b32 v{b+1}, 0xffff0000, v{b}")
        self(f"v_lshlrev_b32 v{b}, 16, v{b}")
        self(f"v_readlane_b32 s{SM}, v{a}, 63")
        self(f"v_readlane_b32 s{SM+1}, v{a+1}, 63")
        self(f"v_readlane_b32 s{SM+2}, v{b}, 63")
        self(f"v_readlane_b32 s{SM+3}, v{b+1}, 63")
        self("s_nop 1")
        for m in range(8):
            self(f"v_pk_add_f32 {self.P(t[m])}, {self.P(z[m])}, s[{SM}:{SM+1}] neg_lo:[0,1] neg_hi:[0,1]")
        self(f"v_pk_mul_f32 {self.P(t[0])}, {self.P(t[0])}, {self.P(t[0])}")
        self(f"v_pk_mul_f32 {self.P(t[1])}, {self.P(t[1])}, {self.P(t[1])}")
        for m in range(2, 8):
            acc = t[m & 1]
            self(f"v_pk_fma_f32 {self.P(acc)}, {self.P(t[m])}, {self.P(t[m])}, {self.P(acc)}")
        self.cadd(t[0], t[0], t[1])
        a = t[0]
        self.wave_reduce2(a)
        self(f"v_mul_f32 v{a}, {f32(1/512)}, v{a}")
        self(f"v_mul_f32 v{a+1}, {f32(1/512)}, v{a+1}")
        b = t[1]
        self.round_pair(a, b)
        self(f"v_add_f32 v{a}, {f32(1e-5)}, v{a}")
        self(f"v_add_f32 v{a+1}, {f32(1e-5)}, v{a+1}")
        self.round_pair(a, b)
        self(f"v_sqrt_f32 v{a}, v{a}")
        self(f"v_sqrt_f32 v{a+1}, v{a+1}")
        self("s_nop 0")
        self.round_pair(a, b)
        self(f"v_rcp_f32 v{a}, v{a}")
        self(f"v_rcp_f32 v{a+1}, v{a+1}")
        self("s_nop 1")
        self(f"v_readlane_b32 s{SM+4}, v{a}, 63")
        self(f"v_readlane_b32 s{SM+5}, v{a+1}, 63")
        for m in range(8):
            self(f"v_pk_add_f32 {self.P(z[m])}, {self.P(z[m])}, s[{SM+2}:{SM+3}] neg_lo:[0,1] neg_hi:[0,1]")
            self.round_pair(z[m], t[2 + (m & 1)])
        for m in range(8):
            self.cscale(z[m], z[m], SM + 4)

    def srd(self, s, base_pair, off, size):
        if off:
            self(f"s_add_u32 s{s}, s{base_pair}, {off}")
            self(f"s_addc_u32 s{s+1}, s{base_pair+1}, 0")
        else:
            self(f"s_mov_b32 s{s}, s{base_pair}")
            self(f"s_mov_b32 s{s+1}, s{base_pair+1}")
        self(f"s_mov_b32 s{s+2}, {size}")
        self(f"s_mov_b32 s{s+3}, 0x00020000")

    def stamp(self):
        if not STAMPS: return
        i = self.nst = getattr(self, "nst", -1) + 1
        self(f"s_memtime s[{60+2*i}:{61+2*i}]")

    def dump_stamps(self, slot):
        if not STAMPS: return
        self("s_waitcnt vmcnt(0) lgkmcnt(0)")
        self.stamp()
        self("s_waitcnt lgkmcnt(0)")
        self.srd(52, 6, 48 * MB + slot * MB, MB)
        self("s_lshl_b32 s56, s2, 4")
        self("s_add_u32 s56, s56, s3")
        self("s_lshl_b32 s56, s56, 7")
        self("v_mov_b32 v0, 0")
        for i in range(self.nst + 1):
            self(f"v_mov_b32 v2, s{60+2*i}")
            self(f"v_mov_b32 v3, s{61+2*i}")
            self(f"buffer_store_dwordx2 v[2:3], v0, s[52:55], s56 offen offset:{8*i}")
            self("s_nop 1")

    def text(self):
        return "\n".join([f".globl {self.name}", ".p2align 8", f".type {self.name},@function", f"{self.name}:"] + self.L) + "\n"

    def desc(self, vgpr, sgpr=96, accum=None):
        if accum is None:
            accum = (vgpr + 3) // 4 * 4
        return "\n".join([".p2align 6", f".amdhsa_kernel {self.name}", f"  .amdhsa_next_free_vgpr {vgpr}",
                          f"  .amdhsa_next_free_sgpr {sgpr}", f"  .amdhsa_accum_offset {accum}",
                          "  .amdhsa_group_segment_fixed_size 0", "  .amdhsa_kernarg_size 88",
                          "  .amdhsa_user_sgpr_count 2", "  .amdhsa_user_sgpr_kernarg_segment_ptr 1",
                          "  .amdhsa_system_sgpr_workgroup_id_x 1", ".end_amdhsa_kernel"]) + "\n"


SH = 20


def consts(k):
    k(f"s_mov_b32 s{SH}, {f32(math.sqrt(0.5))}")
    k(f"s_mov_b32 s{SH+1}, {f32(math.sqrt(0.5))}")
    k(f"s_mov_b32 s{SH+2}, {f32(-math.sqrt(0.5))}")
    k(f"s_mov_b32 s{SH+3}, {f32(-math.sqrt(0.5))}")


N_PRE = 384


def gen_p1(name, first):
    k = K(name)
    end = k.label("end")
    total = 128 + (N_PRE if first else 0)
    k(f"s_cmp_ge_u32 s2, {total}")
    k(f"s_cbranch_scc1 {end}")
    k.stamp()
    k(f"s_load_dwordx2 s[6:7], s[0:1], {KA_WS}")
    if first:
        k(f"s_load_dwordx2 s[4:5], s[0:1], {KA_AX}")
    k("v_lshrrev_b32 v2, 6, v0")
    k("v_and_b32 v1, 63, v0")
    z = [16 + 2 * i for i in range(8)]
    t = [32 + 2 * i for i in range(8)]
    tw1 = [None] + [48 + 2 * i for i in range(7)]
    tw2 = [None] + [62 + 2 * i for i in range(7)]
    k("v_readfirstlane_b32 s3, v2")
    if first:
        pre = k.label("pre")
        k("s_cmp_ge_u32 s2, 128")
        k(f"s_cbranch_scc1 {pre}")
    for r in range(16, 32):
        k(f"v_mov_b32 v{r}, 0")
    consts(k)
    k("s_waitcnt lgkmcnt(0)")
    k.stamp()
    if first:
        k.srd(8, 4, 0, 2 * MB)
    else:
        k.srd(8, 6, WS_X2, 2 * MB)
    k.srd(12, 6, WS_CT, 4 * MB)
    k("s_lshl_b32 s16, s2, 3")
    k("s_add_u32 s16, s16, s3")
    k("s_lshl_b32 s16, s16, 10")
    k(f"s_add_u32 s17, s16, {MB}")
    k("v_lshlrev_b32 v3, 1, v1")
    for m in range(8):
        k(f"buffer_load_short_d16_hi v{z[m]}, v3, s[8:11], s16 offen offset:{128*m}")
        k(f"buffer_load_short_d16_hi v{z[m]+1}, v3, s[8:11], s17 offen offset:{128*m}")
    k("v_cvt_f32_u32 v4, v1")
    k("v_and_b32 v5, 7, v1")
    k("v_cvt_f32_u32 v5, v5")
    for q in range(1, 8):
        k.sincos(tw1[q], 4, q / 512, 6)
    for q in range(1, 8):
        k.sincos(tw2[q], 5, q / 64, 6)
    k("s_lshl_b32 s18, s3, 12")
    k("v_lshlrev_b32 v6, 3, v1")
    k("v_add_u32 v6, s18, v6")
    k("v_lshrrev_b32 v7, 3, v1")
    k("v_lshl_add_u32 v8, v7, 9, v6")
    k("v_and_b32 v9, 7, v1")
    k("v_xor_b32 v9, s3, v9")
    k("v_lshlrev_b32 v9, 3, v9")
    k("v_lshl_add_u32 v9, v7, 6, v9")
    k("v_add_u32 v9, s18, v9")
    k("v_add_u32 v9, 0x8000, v9")
    k("v_and_b32 v10, 7, v1")
    k("v_mul_u32_u24 v10, 4104, v10")
    k("v_lshl_add_u32 v10, v7, 6, v10")
    k("s_lshl_b32 s19, s3, 9")
    k("s_add_u32 s19, s19, 0x8000")
    k("v_add_u32 v10, s19, v10")
    k("v_and_b32 v11, 7, v1")
    k("v_lshlrev_b32 v11, 3, v11")
    k("v_lshl_add_u32 v11, v7, 13, v11")
    k("s_lshl_b32 s24, s3, 16")
    k("s_lshl_b32 s25, s2, 6")
    k("s_add_u32 s24, s24, s25")
    k("s_waitcnt vmcnt(0)")
    k.stamp()
    k.layernorm(z, t, 26)
    k.stamp()
    for m in range(8):
        k.round_pair(z[m], t[m])
    o, f = k.fft8(z, t, False, SH)
    for q in range(1, 8):
        k.cmulc(o[q], o[q], tw1[q], f[q & 1])
    for q in range(8):
        if q:
            k(f"v_xor_b32 v{12 + (q & 1)}, {64*q}, v6")
            a = 12 + (q & 1)
        else:
            a = 6
        k(f"ds_write_b64 v{a}, {k.P(o[q])} offset:{512*q}")
    x2 = f
    for q in range(8):
        if q:
            k(f"v_xor_b32 v{12 + (q & 1)}, {64*q}, v8")
            a = 12 + (q & 1)
        else:
            a = 8
        k(f"ds_read_b64 {k.P(x2[q])}, v{a}")
    k("s_waitcnt lgkmcnt(0)")
    k.stamp()
    o, f = k.fft8(x2, o, False, SH)
    for q in range(1, 8):
        k.cmulc(o[q], o[q], tw2[q], f[q & 1])
    for q in range(8):
        k(f"ds_write_b64 v9, {k.P(o[q])} offset:{512*q}")
    k("s_waitcnt lgkmcnt(0)")
    k.stamp()
    k("s_barrier")
    k.stamp()
    x3 = f
    for q in range(8):
        if q:
            k(f"v_xor_b32 v{12 + (q & 1)}, {8*q}, v10")
            a = 12 + (q & 1)
        else:
            a = 10
        k(f"ds_read_b64 {k.P(x3[q])}, v{a}")
    k("s_waitcnt lgkmcnt(0)")
    k.stamp()
    o, f = k.fft8(x3, o, False, SH)
    for q in range(8):
        k(f"buffer_store_dwordx2 {k.P(o[q])}, v11, s[12:15], s24 offen")
        if q < 7:
            k(f"s_add_u32 s24, s24, {64*8192}")
    k.dump_stamps(0)
    k("s_endpgm")
    if first:
        k.put(pre)
        gen_prepass(k, end)
    k.put(end)
    k("s_endpgm")
    return k


def gen_prepass(k, end):
    k(f"s_load_dwordx4 s[8:11], s[0:1], {KA_WR}")
    k(f"s_load_dwordx2 s[12:13], s[0:1], {KA_W1}")
    k(f"s_load_dwordx2 s[14:15], s[0:1], {KA_W2}")
    k("s_sub_u32 s16, s2, 128")
    k("s_lshl_b32 s16, s16, 3")
    k("s_add_u32 s16, s16, s3")
    k("v_and_b32 v2, 31, v1")
    k("v_lshrrev_b32 v3, 5, v1")
    k("v_lshlrev_b32 v4, 4, v1")
    lw2 = k.label("w2"); lwt = k.label("wt")
    k("s_waitcnt lgkmcnt(0)")
    k("s_cmp_ge_u32 s16, 896")
    k(f"s_cbranch_scc1 {lw2}")
    k.srd(24, 12, 0, 512 * 3584)
    k.srd(28, 6, WS_W1F, 1792 * 1024)
    k("v_mul_u32_u24 v5, 3584, v3")
    k("v_lshl_add_u32 v5, v2, 1, v5")
    k("s_lshr_b32 s17, s16, 4")
    k("s_and_b32 s18, s16, 15")
    k("s_mul_i32 s18, s18, 14336")
    k("s_lshl_b32 s17, s17, 6")
    k("s_add_u32 s18, s18, s17")
    for e in range(2):
        for m in range(8):
            k(f"s_add_u32 s19, s18, {e*7168 + m*229376}")
            op = "buffer_load_short_d16_hi" if m & 1 else "buffer_load_ushort"
            k(f"{op} v{8 + 16*(m&1) + 4*e + m//2}, v5, s[24:27], s19 offen")
    k("s_lshl_b32 s17, s16, 11")
    k("s_waitcnt vmcnt(8)")
    for i in range(4):
        k(f"v_or_b32 v{8+i}, v{8+i}, v{24+i}")
    k("buffer_store_dwordx4 v[8:11], v4, s[28:31], s17 offen")
    k("s_waitcnt vmcnt(1)")
    for i in range(4, 8):
        k(f"v_or_b32 v{8+i}, v{8+i}, v{24+i}")
    k("buffer_store_dwordx4 v[12:15], v4, s[28:31], s17 offen offset:1024")
    k("s_endpgm")
    k.put(lw2)
    k("s_cmp_ge_u32 s16, 1792")
    k(f"s_cbranch_scc1 {lwt}")
    k.srd(24, 14, 0, 1792 * 1024)
    k.srd(28, 6, WS_W2F, 1792 * 1024)
    k("s_sub_u32 s16, s16, 896")
    k(f"s_mul_hi_u32 s17, s16, {(1 << 32) // 56 + 1}")
    k("s_mul_i32 s18, s17, 56")
    k("s_sub_u32 s18, s16, s18")
    k("v_and_b32 v5, 0x13, v2")
    k("v_bfe_u32 v6, v2, 2, 1")
    k("v_lshl_add_u32 v5, v6, 3, v5")
    k("v_bfe_u32 v6, v2, 3, 1")
    k("v_lshl_add_u32 v5, v6, 2, v5")
    k("v_lshlrev_b32 v5, 1, v5")
    k("v_lshl_add_u32 v5, v3, 12, v5")
    k("s_lshl_b32 s18, s18, 15")
    k("s_lshl_b32 s17, s17, 6")
    k("s_add_u32 s18, s18, s17")
    for e in range(2):
        for i in range(8):
            off = e * 16384 + (8 * (i >> 2) + (i & 3)) * 1024
            k(f"s_add_u32 s19, s18, {off}")
            op = "buffer_load_short_d16_hi" if i & 1 else "buffer_load_ushort"
            k(f"{op} v{8 + 16*(i&1) + 4*e + i//2}, v5, s[24:27], s19 offen")
    k("s_lshl_b32 s17, s16, 11")
    k("s_waitcnt vmcnt(8)")
    for i in range(4):
        k(f"v_or_b32 v{8+i}, v{8+i}, v{24+i}")
    k("buffer_store_dwordx4 v[8:11], v4, s[28:31], s17 offen")
    k("s_waitcnt vmcnt(1)")
    for i in range(4, 8):
        k(f"v_or_b32 v{8+i}, v{8+i}, v{24+i}")
    k("buffer_store_dwordx4 v[12:15], v4, s[28:31], s17 offen offset:1024")
    k("s_endpgm")
    k.put(lwt)
    k.srd(24, 8, 0, 2048 * 514)
    k.srd(32, 10, 0, 2048 * 514)
    k.srd(28, 6, WS_WT, 257 * 8192)
    k("s_sub_u32 s16, s16, 1792")
    k("s_lshr_b32 s17, s16, 8")
    k("s_and_b32 s18, s16, 255")
    k("s_lshr_b32 s19, s18, 5")
    k("s_bfe_u32 s36, s18, 0x30002")
    k("s_lshl_b32 s36, s36, 3")
    k("s_add_u32 s19, s19, s36")
    k("s_and_b32 s36, s18, 3")
    k("s_lshl_b32 s36, s36, 6")
    k("s_add_u32 s19, s19, s36")
    k("s_mul_i32 s19, s19, 514")
    k("s_lshl_b32 s36, s17, 7")
    k("s_add_u32 s19, s19, s36")
    k("v_lshlrev_b32 v5, 1, v1")
    for r in range(8):
        f3, f2hi = r & 3, r >> 2
        off = (256 * f2hi + 512 * f3) * 514
        k(f"s_add_u32 s36, s19, {off}")
        k(f"buffer_load_ushort v{8+r}, v5, s[24:27], s36 offen")
        k(f"buffer_load_short_d16_hi v{24+r}, v5, s[32:35], s36 offen")
    k("v_lshlrev_b32 v6, 13, v1")
    k("s_lshl_b32 s17, s17, 19")
    k("s_lshl_b32 s18, s18, 5")
    k("s_add_u32 s17, s17, s18")
    k("s_waitcnt vmcnt(0)")
    for i in range(8):
        k(f"v_or_b32 v{8+i}, v{8+i}, v{24+i}")
    k("buffer_store_dwordx4 v[8:11], v6, s[28:31], s17 offen")
    k("buffer_store_dwordx4 v[12:15], v6, s[28:31], s17 offen offset:16")
    k("s_endpgm")


def gen_p2(name):
    k = K(name)
    end = k.label("end")
    k("s_cmp_ge_u32 s2, 257")
    k(f"s_cbranch_scc1 {end}")
    k.stamp()
    k(f"s_load_dwordx2 s[6:7], s[0:1], {KA_WS}")
    k("v_lshrrev_b32 v2, 6, v0")
    k("v_lshlrev_b32 v1, 3, v0")
    z = [16 + 2 * i for i in range(8)]
    t = [32 + 2 * i for i in range(8)]
    T1 = [None] + [48 + 2 * i for i in range(7)]
    T2 = [None] + [62 + 2 * i for i in range(7)]
    T3 = [None] + [76 + 2 * i for i in range(7)]
    WR = 90
    k("v_readfirstlane_b32 s3, v2")
    consts(k)
    k("s_waitcnt lgkmcnt(0)")
    k.stamp()
    k.srd(8, 6, WS_CT, 4 * MB)
    k.srd(12, 6, WS_DT, 4 * MB)
    k.srd(24, 6, WS_WT, 257 * 8192)
    k("s_lshl_b32 s16, s2, 13")
    k("s_sub_u32 s17, 512, s2")
    k("s_and_b32 s17, s17, 511")
    k("s_lshl_b32 s17, s17, 13")
    k("s_add_u32 s18, s16, 4096")
    k("s_add_u32 s19, s17, 4096")
    for m in range(4):
        sa, sb = (16, 17) if m < 2 else (18, 19)
        k(f"buffer_load_dwordx2 {k.P(t[m])}, v1, s[8:11], s{sa} offen offset:{2048*(m&1)}")
        k(f"buffer_load_dwordx2 {k.P(t[4+m])}, v1, s[8:11], s{sb} offen offset:{2048*(m&1)}")
    k("v_lshlrev_b32 v3, 5, v0")
    k(f"buffer_load_dwordx4 v[{WR}:{WR+3}], v3, s[24:27], s16 offen")
    k(f"buffer_load_dwordx4 v[{WR+4}:{WR+7}], v3, s[24:27], s16 offen offset:16")
    k("v_cvt_f32_u32 v4, v0")
    k("v_and_b32 v5, 31, v0")
    k("v_cvt_f32_u32 v5, v5")
    k("v_and_b32 v6, 3, v0")
    k("v_cvt_f32_u32 v6, v6")
    for q in range(1, 8):
        k.sincos(T1[q], 4, q / 2048, 7)
    for q in range(1, 8):
        k.sincos(T2[q], 5, q / 256, 7)
    for q in range(1, 8):
        k.sincos(T3[q], 6, q / 32, 7)
    k("v_and_b32 v8, 31, v0")
    k("v_lshrrev_b32 v9, 5, v0")
    k("v_lshlrev_b32 v8, 3, v8")
    k("v_lshl_add_u32 v8, v9, 11, v8")
    k("s_lshl_b32 s28, s3, 12")
    k("s_add_u32 s28, s28, 0x8000")
    k("v_and_b32 v9, 31, v0")
    k("v_lshlrev_b32 v9, 3, v9")
    k("v_bfe_u32 v10, v0, 5, 1")
    k("v_lshl_add_u32 v9, v10, 11, v9")
    k("v_add_u32 v9, s28, v9")
    k("v_bfe_u32 v11, v0, 2, 3")
    k("v_lshl_add_u32 v10, v11, 8, v9")
    k("v_and_b32 v11, 63, v0")
    k("v_lshlrev_b32 v11, 3, v11")
    k("v_add_u32 v11, s28, v11")
    k("v_and_b32 v12, 3, v0")
    k("v_lshl_add_u32 v12, v12, 9, v11")
    k("s_waitcnt vmcnt(2)")
    k.stamp()
    for m in range(4):
        k(f"v_pk_add_f32 {k.P(z[m])}, {k.P(t[m])}, {k.P(t[4+m])} neg_hi:[0,1]")
        k(f"v_pk_add_f32 {k.P(z[4+m])}, {k.P(t[m])}, {k.P(t[4+m])} op_sel:[1,1] op_sel_hi:[0,0] neg_hi:[1,0]")

    def xr(base, x, i):
        if x == 0:
            return base
        r = 13 + (i & 1)
        k(f"v_xor_b32 v{r}, {x}, v{base}")
        return r

    o, f = k.fft8(z, t, False, SH)
    for q in range(1, 8):
        k.cmulc(o[q], o[q], T1[q], f[q & 1])
    for q in range(8):
        k(f"ds_write_b64 v1, {k.P(o[q])} offset:{2048*q}")
    k("s_waitcnt lgkmcnt(0)")
    k.stamp()
    k("s_barrier")
    k.stamp()
    for q in range(8):
        k(f"ds_read_b64 {k.P(f[q])}, v8 offset:{256*q}")
    k("s_waitcnt lgkmcnt(0)")
    k.stamp()
    o, f = k.fft8(f, o, False, SH)
    for q in range(1, 8):
        k.cmulc(o[q], o[q], T2[q], f[q & 1])
    for q in range(8):
        a = xr(9, 32 * q, q)
        k(f"ds_write_b64 v{a}, {k.P(o[q])} offset:{256*q}")
    for q in range(8):
        a = xr(10, 32 * q, q)
        k(f"ds_read_b64 {k.P(f[q])}, v{a}")
    k("s_waitcnt lgkmcnt(0)")
    k.stamp()
    o, f = k.fft8(f, o, False, SH)
    for q in range(1, 8):
        k.cmulc(o[q], o[q], T3[q], f[q & 1])
    for q in range(8):
        a = xr(11, 8 * (q & 3), q)
        k(f"ds_write_b64 v{a}, {k.P(o[q])} offset:{512*(q&3) + 2048*(q>>2)}")
    for q in range(8):
        a = xr(12, 8 * (q & 3), q)
        k(f"ds_read_b64 {k.P(f[q])}, v{a} offset:{2048*(q>>2)}")
    k("s_waitcnt lgkmcnt(0)")
    k.stamp()
    x = f; tt = o
    k.fft4(x[0:4], tt[0:4], False)
    k.fft4(x[4:8], tt[4:8], False)
    k("s_waitcnt vmcnt(0)")
    k.stamp()
    for q in range(8):
        w = tt[q]
        k(f"v_lshlrev_b32 v{w}, 16, v{WR+q}")
        k(f"v_and_b32 v{w+1}, 0xffff0000, v{WR+q}")
    for q in range(8):
        k.cmul(x[q], x[q], tt[q], 4 + 2 * (q & 1))
    k.fft4(x[0:4], tt[0:4], True)
    k.fft4(x[4:8], tt[4:8], True)
    for q in range(8):
        a = xr(12, 8 * (q & 3), q)
        k(f"ds_write_b64 v{a}, {k.P(x[q])} offset:{2048*(q>>2)}")
    for q in range(8):
        a = xr(11, 8 * (q & 3), q)
        k(f"ds_read_b64 {k.P(tt[q])}, v{a} offset:{512*(q&3) + 2048*(q>>2)}")
    k("s_waitcnt lgkmcnt(0)")
    k.stamp()
    for q in range(1, 8):
        k.cmul(tt[q], tt[q], T3[q], 4 + 2 * (q & 1))
    o, f = k.fft8(tt, x, True, SH)
    for q in range(8):
        a = xr(10, 32 * q, q)
        k(f"ds_write_b64 v{a}, {k.P(o[q])}")
    for q in range(8):
        a = xr(9, 32 * q, q)
        k(f"ds_read_b64 {k.P(f[q])}, v{a} offset:{256*q}")
    k("s_waitcnt lgkmcnt(0)")
    k.stamp()
    for q in range(1, 8):
        k.cmul(f[q], f[q], T2[q], 4 + 2 * (q & 1))
    o, f = k.fft8(f, o, True, SH)
    for q in range(8):
        k(f"ds_write_b64 v8, {k.P(o[q])} offset:{16384 + 256*q}")
    k("s_waitcnt lgkmcnt(0)")
    k.stamp()
    k("s_barrier")
    k.stamp()
    for q in range(8):
        k(f"ds_read_b64 {k.P(f[q])}, v1 offset:{16384 + 2048*q}")
    k("s_waitcnt lgkmcnt(0)")
    k.stamp()
    for q in range(1, 8):
        k.cmul(f[q], f[q], T1[q], 4 + 2 * (q & 1))
    o, f = k.fft8(f, o, True, SH)
    special = k.label("spec")
    k("v_lshrrev_b32 v2, 3, v0")
    k("v_and_b32 v3, 7, v0")
    k("v_lshlrev_b32 v3, 3, v3")
    k("v_lshl_add_u32 v2, v2, 15, v3")
    k("s_lshr_b32 s16, s16, 7")
    k("s_lshr_b32 s17, s17, 7")
    k("s_and_b32 s29, s2, 255")
    k("s_cmp_eq_u32 s29, 0")
    k(f"s_cbranch_scc1 {special}")
    for m in range(4):
        k.caddi(f[m], o[m], o[m + 4])
        k(f"v_pk_add_f32 {k.P(f[4+m])}, {k.P(o[m])}, {k.P(o[m+4])} op_sel:[0,1] op_sel_hi:[1,0] neg_hi:[1,0]")
    for m in range(4):
        k(f"buffer_store_dwordx2 {k.P(f[m])}, v2, s[12:15], s16 offen")
        k(f"buffer_store_dwordx2 {k.P(f[4+m])}, v2, s[12:15], s17 offen")
        if m < 3:
            k(f"s_add_u32 s16, s16, {MB}")
            k(f"s_add_u32 s17, s17, {MB}")
    k.dump_stamps(1)
    k("s_endpgm")
    k.put(special)
    for m in range(4):
        k(f"v_mov_b32 v{o[m]+1}, v{o[m+4]}")
    for m in range(4):
        k(f"buffer_store_dwordx2 {k.P(o[m])}, v2, s[12:15], s16 offen")
        if m < 3:
            k(f"s_add_u32 s16, s16, {MB}")
    k.put(end)
    k("s_endpgm")
    return k


def gen_p3(name, first):
    k = K(name)
    end = k.label("end")
    k("s_cmp_ge_u32 s2, 256")
    k(f"s_cbranch_scc1 {end}")
    k.stamp()
    k(f"s_load_dwordx2 s[6:7], s[0:1], {KA_WS}")
    if first:
        k(f"s_load_dwordx2 s[4:5], s[0:1], {KA_AX}")
    k("v_lshrrev_b32 v2, 6, v0")
    k("v_and_b32 v1, 63, v0")
    z = [16 + 2 * i for i in range(8)]
    t = [32 + 2 * i for i in range(8)]
    tw1 = [48 + 2 * i for i in range(8)]
    tw2 = [None] + [64 + 2 * i for i in range(7)]
    X = [80 + 2 * i for i in range(8)]
    k("v_readfirstlane_b32 s3, v2")
    for r in range(80, 96):
        k(f"v_mov_b32 v{r}, 0")
    consts(k)
    k("s_waitcnt lgkmcnt(0)")
    k.stamp()
    if first:
        k.srd(8, 4, 0, 2 * MB)
    else:
        k.srd(8, 6, WS_X2, 2 * MB)
    k.srd(12, 6, WS_DT, 4 * MB)
    k.srd(32, 6, WS_X1 if first else WS_X3, 2 * MB)
    k.srd(36, 6, WS_AP, 2 * MB)
    k("v_lshrrev_b32 v7, 3, v1")
    k("v_lshrrev_b32 v11, 2, v1")
    k("v_and_b32 v12, 3, v1")
    k("v_lshlrev_b32 v12, 3, v12")
    k("v_lshl_add_u32 v11, v11, 6, v12")
    k("s_lshl_b32 s24, s3, 10")
    k("s_lshr_b32 s25, s2, 1")
    k("s_lshl_b32 s25, s25, 15")
    k("s_add_u32 s24, s24, s25")
    k("s_and_b32 s25, s2, 1")
    k("s_lshl_b32 s25, s25, 5")
    k("s_add_u32 s24, s24, s25")
    for q in range(8):
        k(f"buffer_load_dwordx2 {k.P(z[q])}, v11, s[12:15], s24 offen")
        if q < 7:
            k(f"s_add_u32 s24, s24, 4096")
    k("s_lshl_b32 s16, s2, 2")
    k("s_add_u32 s16, s16, s3")
    k("s_lshl_b32 s16, s16, 10")
    k(f"s_add_u32 s17, s16, {MB}")
    k("v_lshlrev_b32 v3, 1, v1")
    for m in range(8):
        k(f"buffer_load_short_d16_hi v{X[m]}, v3, s[8:11], s16 offen offset:{128*m}")
        k(f"buffer_load_short_d16_hi v{X[m]+1}, v3, s[8:11], s17 offen offset:{128*m}")
    k("v_lshrrev_b32 v5, 5, v0")
    k("v_cvt_f32_u32 v5, v5")
    for q in range(1, 8):
        k.sincos(tw2[q], 5, q / 64, 6)
    k("v_and_b32 v4, 7, v1")
    for q in range(8):
        k(f"v_add_u32 v5, {8*q}, v4")
        k("v_mul_u32_u24 v5, v5, v7")
        k("v_cvt_f32_u32 v5, v5")
        k.sincos(tw1[q], 5, 1 / 512, 6)
    k("s_lshl_b32 s18, s3, 12")
    k("v_lshlrev_b32 v6, 3, v1")
    k("v_add_u32 v6, s18, v6")
    k("v_lshl_add_u32 v8, v7, 9, v6")
    k("v_and_b32 v9, 7, v1")
    k("s_lshl_b32 s19, s3, 3")
    k("v_add_u32 v10, s19, v7")
    k("v_lshlrev_b32 v11, 1, v9")
    k("v_xor_b32 v10, v10, v11")
    k("v_lshl_add_u32 v9, v9, 5, v10")
    k("v_lshlrev_b32 v9, 3, v9")
    k("v_add_u32 v9, 0x4000, v9")
    k("v_and_b32 v10, 3, v1")
    k("v_bfe_u32 v11, v1, 2, 3")
    k("v_lshrrev_b32 v12, 5, v1")
    k("v_lshl_add_u32 v10, v10, 3, v11")
    k("v_lshl_add_u32 v10, v12, 8, v10")
    k("v_lshlrev_b32 v10, 3, v10")
    k("s_lshl_b32 s19, s3, 12")
    k("s_add_u32 s19, s19, 0x4000")
    k("v_add_u32 v10, s19, v10")
    k(f"s_mov_b32 s40, {f32(2.0**-21)}")
    k(f"s_mov_b32 s41, {f32(2.0**-21)}")
    k("s_waitcnt vmcnt(16)")
    k.stamp()
    o, f = k.fft8(z, t, True, SH)
    for q in range(1, 8):
        k.cmul(o[q], o[q], tw2[q], f[q & 1])
    for q in range(8):
        if q:
            k(f"v_xor_b32 v{12 + (q & 1)}, {16*q}, v10")
            a = 12 + (q & 1)
        else:
            a = 10
        k(f"ds_write_b64 v{a}, {k.P(o[q])} offset:{256*q}")
    k("s_waitcnt lgkmcnt(0)")
    k.stamp()
    k("s_barrier")
    k.stamp()
    for q in range(8):
        k(f"ds_read_b64 {k.P(f[q])}, v9 offset:{2048*q}")
    k("s_waitcnt lgkmcnt(0)")
    k.stamp()
    o, f = k.fft8(f, o, True, SH)
    for q in range(8):
        k.cmul(o[q], o[q], tw1[q], f[q & 1])
    for q in range(8):
        if q:
            k(f"v_xor_b32 v{12 + (q & 1)}, {64*q}, v8")
            a = 12 + (q & 1)
        else:
            a = 8
        k(f"ds_write_b64 v{a}, {k.P(o[q])}")
    for q in range(8):
        if q:
            k(f"v_xor_b32 v{12 + (q & 1)}, {64*q}, v6")
            a = 12 + (q & 1)
        else:
            a = 6
        k(f"ds_read_b64 {k.P(f[q])}, v{a} offset:{512*q}")
    k("s_waitcnt lgkmcnt(0)")
    k.stamp()
    o, f = k.fft8(f, o, True, SH)
    k("s_waitcnt vmcnt(0)")
    k.stamp()
    for m in range(8):
        k.cscale(o[m], o[m], 40)
        k.round_pair(o[m], f[m])
    for m in range(8):
        k.cadd(o[m], o[m], X[m])
        k.round_pair(o[m], X[m])
    for m in range(8):
        k(f"buffer_store_short v{X[m]}, v3, s[32:35], s16 offen offset:{128*m}")
        k(f"buffer_store_short_d16_hi v{X[m]}, v3, s[32:35], s17 offen offset:{128*m}")
    k.layernorm(o, f, 26)
    k.stamp()
    for m in range(4):
        k(f"v_cvt_pk_bf16_f32 v{48+m}, v{o[2*m]}, v{o[2*m+1]}")
        k(f"v_cvt_pk_bf16_f32 v{52+m}, v{o[2*m]+1}, v{o[2*m+1]+1}")
    k("v_lshlrev_b32 v4, 4, v1")
    k("buffer_store_dwordx4 v[48:51], v4, s[36:39], s16 offen")
    k("buffer_store_dwordx4 v[52:55], v4, s[36:39], s17 offen")
    k.dump_stamps(2)
    k("s_endpgm")
    k.put(end)
    k("s_endpgm")
    return k


def build(stages, path):
    ks = {}
    launches = []

    def add(kern, grid, block, lds, vgpr, **kw):
        if kern.name not in ks:
            ks[kern.name] = (kern, vgpr, kw)
        launches.append(f"; @launch kernel={kern.name} grid=({grid},1,1) block=({block},1,1) lds={lds}")

    for st in stages:
        if st == "p1a":
            add(gen_p1("p1a_kernel", True), 128 + N_PRE, 512, 65536, 80)
        elif st == "p1b":
            add(gen_p1("p1b_kernel", False), 128, 512, 65536, 80)
        elif st in ("p2",):
            add(gen_p2("p2_kernel"), 257, 256, 49152, 104)
        elif st == "p3a":
            add(gen_p3("p3a_kernel", True), 256, 256, 32768, 96)
        elif st == "p3b":
            add(gen_p3("p3b_kernel", False), 256, 256, 32768, 96)
        else:
            import gen_gemm
            gen_gemm.add_stage(st, add)
    hdr = ["; generated by dev/gen.py"] + launches
    out = "\n".join(hdr) + "\n" + '.amdgcn_target "amdgcn-amd-amdhsa--gfx950"\n.text\n'
    for kern, vg, kw in ks.values():
        out += kern.text()
    out += '.section .rodata,"a"\n'
    for kern, vg, kw in ks.values():
        out += kern.desc(vg, **kw)
    open(path, "w").write(out)


if __name__ == "__main__":
    build(sys.argv[2].split(","), sys.argv[1])
```
